```python
import torch

def _softmax(x, axis=-1):
    return torch.softmax(x, dim=axis)
def _gelu(x):
    return torch.nn.functional.gelu(x, approximate="tanh")
def _silu(x):
    return torch.nn.functional.silu(x)
def _sigmoid(x):
    return torch.sigmoid(x)
def _layernorm(x, axis=-1, eps=1e-5):
    m = x.mean(dim=axis, keepdim=True)
    v = x.var(dim=axis, keepdim=True, unbiased=False)
    return (x - m) / torch.sqrt(v + eps)
def _scatter_add(tgt, idx, src, axis=0):
    return tgt.clone().index_add_(axis, idx, src)
def _segment_sum(src, seg, n):
    out = torch.zeros((n,) + src.shape[1:], dtype=src.dtype)
    return out.index_add_(0, seg, src)
def _pad(x, pw):
    flat = tuple(v for pair in reversed(pw) for v in pair)
    return torch.nn.functional.pad(x, flat)

kernel_name = 'standalone__mha_block_cached__near_ridge'

def setup_inputs():

    _w = (lambda a: (lambda t: t.to(torch.bfloat16) if t.is_floating_point() else t)(torch.as_tensor(a)))
    B, Sq, D = 8, 224, 448
    H, Sk, Dh = 16, 1024, 256
    return {
        "x": _w((lambda *s: torch.randn(*s, dtype=torch.bfloat16) * 0.8)(B, Sq, D)),
        "k_cache": _w((lambda *s: torch.randn(*s, dtype=torch.bfloat16) * 0.8)(B, H, Sk, Dh)),
        "v_cache": _w((lambda *s: torch.randn(*s, dtype=torch.bfloat16) * 0.05)(B, H, Sk, Dh)),
        "wq": _w((lambda *s: torch.randn(*s, dtype=torch.bfloat16) * 0.8)(D, H * Dh) * (D ** -0.5)),
        "wo": _w((lambda *s: torch.randn(*s, dtype=torch.bfloat16) * 0.05)(H * Dh, D) * ((H * Dh) ** -0.5)),
    }

def reference(x, k_cache, v_cache, wq, wo):
    B, Sq, D = x.shape
    H, Dh = 16, 256
    q = (lambda x, *d: x.permute(*d))((x @ wq).reshape(B, Sq, H, Dh), 0, 2, 1, 3)
    scores = torch.einsum("bhqd,bhkd->bhqk", q, k_cache) * (Dh ** -0.5)
    p = _softmax(scores, axis=-1)
    o = torch.einsum("bhqk,bhkd->bhqd", p, v_cache)
    return (lambda x, *d: x.permute(*d))(o, 0, 2, 1, 3).reshape(B, Sq, H * Dh) @ wo
```

```python
import sys, math, struct

def f2u(x): return struct.unpack("<I", struct.pack("<f", x))[0]

class Cfg:
    nt_kv = True
    st_flags = ""
    rd_flags = ""
    stamps = False
    wait_every = 2
    T = 16.0
    prio_c = 0
    prio_h = 0
    formal = True

PAIR = 34816; HALF = 17408; KST = 1040; VST = 1088
XBASE = 3 * PAIR; XT = 16640
LDS_BYTES = 163840
C_SCALE = math.log2(math.e) / 16.0

O0 = 0; Q0 = 128; SA = 192; SB = 208; F0 = 224
vAK = 248; vAV = 249; vNEG = 250; vTHR = 251; vL = 252; vMX = 253; vF = 254; vT = 255
sX, sK, sV, sWQ, sWO, sWS = 20, 24, 28, 32, 36, 40
sWAVE, sB, sH, sHALF, sROT = 44, 45, 46, 47, 48
sC = 49
sT0, sT1, sT2, sT3 = 50, 51, 52, 53
sCNT = 54; sDELTA = 55; sIDX = 56; sD2 = 57; sSTB = 58; sCH = 59
sLK, sLV, sLO = 60, 61, 62
sWOFF, sXOFF, sKVOFF, sOOFF = 63, 64, 65, 66
sSTAMP = 70

def vr(a, n): return f"v[{a}:{a+n-1}]"
def sr(a, n=4): return f"s[{a}:{a+n-1}]"

class Em:
    def __init__(self):
        self.L = []
        self.q = []
    def __call__(self, s):
        for l in s.split("\n"):
            self.L.append("    " + l if not l.endswith(":") else l)
    def ds(self, s, tag):
        self(s); self.q.append(tag)
        assert len(self.q) <= 15, "lgkmcnt overflow"
    def wait(self, tags):
        idx = -1
        for i, t in enumerate(self.q):
            if t in tags: idx = i
        if idx < 0: return False
        n = len(self.q) - 1 - idx
        self(f"s_waitcnt lgkmcnt({n})")
        self.q = self.q[idx+1:]
        return True
    def waitall(self):
        self("s_waitcnt lgkmcnt(0)"); self.q = []

def bufseq(n):
    if n == 32: return [0,1,2,3,4]*4 + [0,1,2,3,4,5]*2
    if n == 16: return [0,1,2,3] + [0,1,2,3,4,5]*2
    raise

class MF:
    def __init__(self, d, b, c, loads, extra_tags=()):
        self.d, self.b, self.c, self.loads, self.extra = d, b, c, loads, tuple(extra_tags)

def kload(off):
    return [lambda f, off=off: f"ds_read_b128 {vr(f,4)}, v{vAK} offset:{off}"]
def trload(areg, off0, off1):
    return [lambda f, o=off0: f"ds_read_b64_tr_b16 {vr(f,2)}, v{areg} offset:{o}",
            lambda f, o=off1: f"ds_read_b64_tr_b16 {vr(f+2,2)}, v{areg} offset:{o}"]

def mf_qk(Y, base):
    return [MF(vr(Y,16), vr(Q0+4*s,4), "0" if s == 0 else vr(Y,16), kload(base + s*32)) for s in range(16)]
def mf_pv(X, base, first=False):
    r = []
    for t in range(2):
        for dt in range(8):
            o = base + t*512 + dt*64
            r.append(MF(vr(O0+16*dt,16), vr(X+4*t,4), "0" if (first and t == 0) else vr(O0+16*dt,16), trload(vAV, o, o + 8*VST)))
    return r
def mf_qproj():
    r = []
    for a in range(2):
        for t in range(2):
            for dt in range(8):
                o = a*HALF + t*512 + dt*64
                r.append(MF(vr(O0+16*dt,16), vr(SB+4*(a*2+t),4), vr(O0+16*dt,16), trload(vAV, o, o + 4*VST), extra_tags=[f"x{a*2+t}"]))
    return r
def mf_oproj(acc, base):
    r = []
    for ks in range(16):
        for nt in range(2):
            o = base + (16*ks) * 128
            r.append(MF(vr(acc+16*nt,16), vr(Q0+4*ks,4), "0" if ks == 0 else vr(acc+16*nt,16), trload(vAK if nt == 0 else vAV, o, o + 8*128)))
    return r

def emit_block(e, cfg, name, mfs, nxt, fill, nxtname, barrier=True, pre_issued=5, post_barrier=None):
    n = len(mfs)
    if n == 32:
        seq = [0,1,2,3,4]*4 + [0,1,2,3,4,5]*2
        ig = {m: (m-5 if m <= 24 else m-6) for m in range(n)}
    else:
        seq = [0,1,2,3,4] + [0,1,2,3,4] + [0,1,2,3,4,5]
        ig = {m: m-5 for m in range(n)}
        ig[15] = 9
    bar_gap = n - 5
    def issue(mf, buf, tag):
        for ld in mf.loads: e.ds(ld(F0 + 4*buf), tag)
    for m in range(n):
        mf = mfs[m]
        tags = {(name, m)} | set(mf.extra)
        if cfg.wait_every == 2:
            if m % 2 == 0 and m + 1 < n: tags |= {(name, m+1)} | set(mfs[m+1].extra)
        e.wait(tags)
        e(f"v_mfma_f32_32x32x16_bf16 {mf.d}, {vr(F0+4*seq[m],4)}, {mf.b}, {mf.c}")
        for mm in range(pre_issued, n):
            if ig[mm] == m: issue(mfs[mm], seq[mm], (name, mm))
        if nxt is not None and m > bar_gap:
            k = m - bar_gap
            lst = [0, 1] if k == 1 else [k]
            for mm in lst: issue(nxt[mm], mm, (nxtname, mm))
            if post_barrier and k in post_barrier:
                for it in post_barrier[k]: e.ds(*it)
        for it in fill.get(m, []):
            if isinstance(it, tuple): e.ds(*it)
            else: e(it)
        if m == bar_gap and barrier:
            if cfg.formal: e.waitall()
            e("s_barrier")

def rename(e, old, new):
    e.q = [((new, t[1]) if isinstance(t, tuple) and t[0] == old else t) for t in e.q]

def softmax_ops(X):
    ops = []
    for step in range(16 + 3):
        if step < 16: ops.append((1, f"v_fma_f32 v{X+step}, v{X+step}, s{sC}, v{vNEG}"))
        e1 = step - 1
        if 0 <= e1 < 16: ops.append((2, f"v_exp_f32 v{X+e1}, v{X+e1}"))
        e2 = step - 2
        if 0 <= e2 < 16:
            if step >= 17: ops.append((1, "s_nop 0"))
            ops.append((1, f"v_add_f32 v{vL}, v{vL}, v{X+e2}"))
        e3 = step - 3
        if 0 <= e3 < 16 and e3 % 2 == 1:
            k = e3 // 2
            ops.append((1, f"v_cvt_pk_bf16_f32 v{X+k}, v{X+2*k}, v{X+2*k+1}"))
    return ops

def max_ops(Y):
    ops = [f"v_max3_f32 v{vMX}, v{Y}, v{Y+1}, v{Y+2}"]
    for i in range(6): ops.append(f"v_max3_f32 v{vMX}, v{vMX}, v{Y+3+2*i}, v{Y+4+2*i}")
    ops.append(f"v_max_f32 v{vMX}, v{vMX}, v{Y+15}")
    return ops

def distribute(ops, gaps, budgets, fill):
    i = 0
    for g, b in zip(gaps, budgets):
        used = 0
        while i < len(ops) and used + ops[i][0] <= b:
            fill.setdefault(g, []).append(ops[i][1]); used += ops[i][0]; i += 1
    return ops[i:]

TAIL_GAPS = [22,23,24,25,26,27,28,29,30,31]
TAIL_BUD  = [3, 3, 3, 3, 5, 3, 3, 4, 4, 3]
HEAD_GAPS = list(range(0, 15))
HEAD_BUD  = [4,4,4,4,4,4,4,4,4,4,3,3,3,3,3]

def gen(cfg):
    e = Em()
    KA = "mha_main_kernel"; KB = "mha_reduce_kernel"
    hdr = f"""; fused MHA block: kernel A = Qproj + attention + out-proj partials, kernel B = head reduction
; @launch kernel={KA} grid=(256,1,1) block=(512,1,1) lds={LDS_BYTES}
; @launch kernel={KB} grid=(256,1,1) block=(448,1,1) lds=0
.amdgcn_target "amdgcn-amd-amdhsa--gfx950"
.text
.globl {KA}
.p2align 8
.type {KA},@function
{KA}:"""
    nst = [0]
    def stamp():
        if not cfg.stamps: return
        i = nst[0]; nst[0] += 1
        e(f"s_memrealtime s[{sSTAMP}:{sSTAMP+1}]\ns_waitcnt lgkmcnt(0)\ns_mov_b32 s{72+i}, s{sSTAMP}")
        e.q = []
    e("s_cmp_ge_u32 s2, 256\ns_cbranch_scc1 LA_end")
    e("s_load_dwordx16 s[4:19], s[0:1], 0")
    e("v_lshrrev_b32 v1, 6, v0\nv_and_b32 v0, 63, v0")
    e(f"v_readfirstlane_b32 s{sWAVE}, v1")
    e(f"""s_and_b32 s{sT0}, s2, 7
s_lshr_b32 s{sT1}, s2, 3
s_and_b32 s{sHALF}, s{sT1}, 1
s_lshr_b32 s{sT1}, s{sT1}, 1
s_lshr_b32 s{sT2}, s{sT1}, 2
s_and_b32 s{sT3}, s{sT1}, 3
s_lshr_b32 s{sB}, s{sT0}, 2
s_lshl_b32 s{sB}, s{sB}, 2
s_add_u32 s{sB}, s{sB}, s{sT2}
s_and_b32 s{sH}, s{sT0}, 3
s_lshl_b32 s{sH}, s{sH}, 2
s_add_u32 s{sH}, s{sH}, s{sT3}
s_add_u32 s{sROT}, s{sT2}, s{sT3}
s_lshl_b32 s{sROT}, s{sROT}, 1
s_add_u32 s{sROT}, s{sROT}, s{sHALF}
s_sub_u32 s{sT0}, s{sROT}, 7
s_cmp_ge_u32 s{sROT}, 7
s_cselect_b32 s{sROT}, s{sT0}, s{sROT}""")
    e("s_waitcnt lgkmcnt(0)")
    for srd, p, nb in ((sX,4,1605632),(sK,6,67108864),(sV,8,67108864),(sWQ,10,3670016),(sWO,12,3670016),(sWS,18,268435456)):
        e(f"s_mov_b32 s{srd}, s{p}\ns_mov_b32 s{srd+1}, s{p+1}\ns_mov_b32 s{srd+2}, {nb}\ns_mov_b32 s{srd+3}, 0x20000")
    e(f"s_cmp_ge_u32 s{sWAVE}, 4\ns_cbranch_scc1 LA_helper")

    if cfg.prio_c: e(f"s_setprio {cfg.prio_c}")
    stamp()
    lane = vT
    e(f"v_mov_b32 v{lane}, v0")
    e(f"s_mov_b32 s{sC}, {hex(f2u(C_SCALE))}")
    t = SA
    def lane_fields():
        e(f"""v_lshrrev_b32 v{t}, 5, v{lane}
v_bfe_u32 v{t+1}, v{lane}, 2, 2
v_bfe_u32 v{t+2}, v{lane}, 4, 1
v_and_b32 v{t+3}, 3, v{lane}
v_and_b32 v{t+4}, 1, v{lane}
v_lshlrev_b32 v{t+4}, 1, v{t+4}
v_bfe_u32 v{t+5}, v{lane}, 1, 1
v_or_b32 v{t+4}, v{t+4}, v{t+5}
v_and_b32 v{t+5}, 15, v{lane}""")
    lane_fields()
    e(f"""v_lshl_add_u32 v{t+6}, v{t}, 3, v{t+1}
v_mul_u32_u24 v{vAV}, {VST}, v{t+6}
v_lshl_add_u32 v{vAV}, v{t+2}, 5, v{vAV}
v_lshl_add_u32 v{vAV}, v{t+4}, 3, v{vAV}
v_add_u32 v{vAV}, {2*PAIR}, v{vAV}""")
    e(f"""v_mul_u32_u24 v{vMX}, {KST}, v{t+5}
v_lshl_add_u32 v{vMX}, v{t+2}, 9, v{vMX}
v_lshl_add_u32 v{vMX}, v{t}, 4, v{vMX}""")
    e(f"s_lshl_b32 s{sT0}, s{sWAVE}, 7\ns_add_u32 s{sT0}, s{sT0}, {XBASE + 2*XT}\nv_add_u32 v{vAK}, s{sT0}, v{vMX}")
    e(f"""v_lshl_add_u32 v{t+6}, v{t}, 2, v{t+1}
v_mul_u32_u24 v{vF}, {VST}, v{t+6}
v_lshl_add_u32 v{vF}, v{t+2}, 5, v{vF}
v_lshl_add_u32 v{vF}, v{t+3}, 3, v{vF}
v_add_u32 v{vF}, {HALF}, v{vF}""")
    for i in range(0, 128, 2): e(f"v_mov_b64 {vr(i,2)}, 0")
    e(f"s_mov_b32 s{sCNT}, 7\ns_mov_b32 s{sIDX}, 2")
    e("s_barrier")
    stamp()
    qp = mf_qproj()
    def xload(i): return (f"ds_read_b128 {vr(SB+4*i,4)}, v{vAK} offset:{i*32}", f"x{i}")
    for mm in (0, 1):
        for ld in qp[mm].loads: e.ds(ld(F0+4*mm), ("qp", mm))
    e.ds(*xload(0))
    for mm in (2, 3, 4):
        for ld in qp[mm].loads: e.ds(ld(F0+4*mm), ("qp", mm))
    q_entry = list(e.q)
    e(".p2align 3\nLA_qp:")
    fill = {
        1: [xload(1)], 8: [xload(2)], 16: [xload(3)],
        20: [f"s_add_u32 s{sIDX}, s{sIDX}, 1", f"s_cmp_eq_u32 s{sIDX}, 3"],
        21: [f"s_cselect_b32 s{sDELTA}, {(-2*PAIR) & 0xffffffff}, {PAIR}" if False else f"s_cselect_b32 s{sIDX}, 0, s{sIDX}",
             f"s_cselect_b32 s{sDELTA}, -2, 1"],
        22: [f"s_mul_i32 s{sD2}, s{sDELTA}, {XT}", f"s_mul_i32 s{sDELTA}, s{sDELTA}, {PAIR}"],
        26: [f"v_add_u32 v{vAV}, s{sDELTA}, v{vAV}", f"v_add_u32 v{vAK}, s{sD2}, v{vAK}", f"s_sub_u32 s{sCNT}, s{sCNT}, 1"],
        31: [f"s_cmp_lg_u32 s{sCNT}, 0"],
    }
    emit_block(e, cfg, "qp", qp, qp, fill, "qpn", post_barrier={1: [xload(0)]})
    rename(e, "qpn", "qp")
    assert e.q == q_entry, (e.q, q_entry)
    e("s_cbranch_scc1 LA_qp")
    stamp()
    rename(e, "qp", "junk")
    e(f"v_mov_b32 v{vAK}, v{vMX}\nv_mov_b32 v{vAV}, v{vF}")
    qk0 = mf_qk(SA, 0)
    e.waitall()
    for mm in range(5):
        for ld in qk0[mm].loads: e.ds(ld(F0+4*mm), ("qk0", mm))
    def qcvt(s):
        b = O0 + 16*(s >> 1) + 8*(s & 1)
        return [f"v_cvt_pk_bf16_f32 v{Q0+4*s+k}, v{b+2*k}, v{b+2*k+1}" for k in range(4)]
    for s in range(2):
        for x in qcvt(s): e(x)
    fill = {g: qcvt(g+2) for g in range(14)}
    st8 = mf_qk(SB, PAIR) + mf_pv(SA, PAIR, first=True)
    emit_block(e, cfg, "qk0", qk0, st8, fill, "m")
    def tail_fill(fill, Y, site):
        mo = max_ops(Y)
        fill.setdefault(18, []).extend(mo[0:3]); fill.setdefault(19, []).extend(mo[3:4]); fill.setdefault(20, []).extend(mo[4:7])
        fill.setdefault(21, []).extend(mo[7:8] + [f"v_cmp_gt_f32 vcc, v{vMX}, v{vTHR}"])
        fill.setdefault(22, []).extend([f"s_cbranch_vccnz LA_rareA{site}", f"LA_retA{site}:"])
        rem = distribute(softmax_ops(Y), TAIL_GAPS, TAIL_BUD, fill)
        fill.setdefault(31, []).extend([f"s_cbranch_vccnz LA_rareB{site}", f"LA_retB{site}:"])
        return len(rem)
    ntail_rem = None
    fill = {}
    init = [(1, x) for x in max_ops(SA)] + [(1, f"v_mov_b32 v{vT}, v{vMX}"), (1, f"v_mov_b32 v{vL}, 0"), (1, "s_nop 0"),
            (1, f"v_permlane32_swap_b32 v{vT}, v{vMX}"), (1, f"v_max_f32 v{vMX}, v{vMX}, v{vT}"),
            (1, f"v_mul_f32 v{vNEG}, {hex(f2u(-C_SCALE))}, v{vMX}"), (1, f"v_add_f32 v{vTHR}, {hex(f2u(cfg.T / C_SCALE))}, v{vMX}")]
    fill[0] = ["s_nop 7"]
    rem = distribute(init + softmax_ops(SA), list(range(1, 15)), [7]*14, fill)
    assert not rem, rem
    fill.setdefault(15, []).append(f"v_add_u32 v{vAK}, {2*PAIR}, v{vAK}")
    fill[15].append(f"s_mov_b32 s{sCNT}, 15"); fill[15].append(f"s_mov_b32 s{sDELTA}, {(-2*PAIR) & 0xffffffff}")
    ntail_rem = tail_fill(fill, SB, 0)
    fill.setdefault(27, []).append(f"v_add_u32 v{vAV}, {2*PAIR}, v{vAV}")
    lA = mf_qk(SA, 0) + mf_pv(SB, 0)
    lB = mf_qk(SB, PAIR) + mf_pv(SA, PAIR)
    emit_block(e, cfg, "m", st8, lA, fill, "mA")
    q_entry = list(e.q)
    stamp_q = list(e.q)
    e(".p2align 3\nLA_main:")
    def head_fill(X):
        fill = {}
        ops = softmax_ops(X)
        ops = ops[len(ops)-ntail_rem:]
        rem = distribute(ops, HEAD_GAPS, HEAD_BUD, fill)
        assert not rem, rem
        return fill
    fill = head_fill(SB); tail_fill(fill, SA, 1)
    emit_block(e, cfg, "mA", lA, lB, fill, "mB")
    fill = head_fill(SA)
    fill.setdefault(15, []).append(f"v_add_u32 v{vAK}, s{sDELTA}, v{vAK}")
    fill.setdefault(16, []).append(f"s_sub_u32 s{sCNT}, s{sCNT}, 1")
    tail_fill(fill, SB, 2)
    fill.setdefault(27, []).insert(0, f"v_add_u32 v{vAV}, s{sDELTA}, v{vAV}")
    fill.setdefault(28, []).append(f"s_sub_u32 s{sDELTA}, 0, s{sDELTA}")
    fill.setdefault(31, []).append(f"s_cmp_lg_u32 s{sCNT}, 0")
    emit_block(e, cfg, "mB", lB, lA, fill, "mA")
    assert e.q == q_entry, (e.q, q_entry)
    e("s_cbranch_scc1 LA_main")
    stamp()
    rename(e, "mA", "junk")
    pvl = mf_pv(SB, 0)
    e.waitall()
    for mm in range(5):
        for ld in pvl[mm].loads: e.ds(ld(F0+4*mm), ("pvl", mm))
    ops = softmax_ops(SB); ops = ops[len(ops)-ntail_rem:]
    for c_, x in ops: e(x)
    e("s_nop 1")
    t = SA
    fill = {}
    fill[0] = [f"v_mov_b32 v{vT}, v{vL}", f"v_mbcnt_lo_u32_b32 v{vMX}, -1, 0", f"v_mbcnt_hi_u32_b32 v{vMX}, -1, v{vMX}"]
    fill[1] = [f"v_permlane32_swap_b32 v{vT}, v{vL}", f"v_add_f32 v{vL}, v{vL}, v{vT}", f"v_rcp_f32 v{vF}, v{vL}"]
    ln = vMX
    fill[2] = f"""v_lshrrev_b32 v{t}, 5, v{ln}
v_bfe_u32 v{t+1}, v{ln}, 2, 2
v_bfe_u32 v{t+2}, v{ln}, 4, 1""".split("\n")
    fill[3] = f"""v_and_b32 v{t+4}, 1, v{ln}
v_lshlrev_b32 v{t+4}, 1, v{t+4}
v_bfe_u32 v{t+5}, v{ln}, 1, 1""".split("\n")
    fill[4] = f"""v_or_b32 v{t+4}, v{t+4}, v{t+5}
v_lshl_add_u32 v{t+6}, v{t}, 2, v{t+1}
v_lshlrev_b32 v{t+6}, 7, v{t+6}""".split("\n")
    fill[5] = f"""v_lshl_add_u32 v{t+6}, v{t+2}, 5, v{t+6}
v_lshl_add_u32 v{t+6}, v{t+4}, 3, v{t+6}
v_bfe_u32 v{t+7}, v{ln}, 3, 1""".split("\n")
    fill[6] = f"""v_lshl_add_u32 v{vAK}, v{t+7}, 6, v{t+6}
v_add_u32 v{vAK}, {PAIR-32768}, v{vAK}
v_xor_b32 v{t+6}, 64, v{vAK}""".split("\n")
    fill[7] = f"""v_lshlrev_b32 v{vTHR}, 4, v{ln}
s_cmp_eq_u32 s{sWAVE}, 3
s_cselect_b32 s{sT0}, 0x70000000, 0""".split("\n")
    fill[8] = f"""v_mul_lo_u32 v{t+7}, v{t+2}, s{sT0}
v_add_u32 v{vTHR}, v{vTHR}, v{t+7}""".split("\n")
    fill[10] = [f"v_mov_b32 v{vAV}, v{t+6}",
                f"s_lshl_b32 s{sT0}, s{sB}, 1", f"s_add_u32 s{sT0}, s{sT0}, s{sHALF}", f"s_lshl_b32 s{sT0}, s{sT0}, 4", f"s_add_u32 s{sT0}, s{sT0}, s{sH}"]
    fill[12] = [f"s_lshl_b32 s{sT0}, s{sT0}, 2", f"s_add_u32 s{sT0}, s{sT0}, s{sWAVE}", f"s_mul_i32 s{sSTB}, s{sT0}, {28*1024}", f"s_mov_b32 s{sCH}, s{sROT}"]
    op0 = mf_oproj(0, 32768)
    emit_block(e, cfg, "pvl", pvl, op0, fill, "o0")
    e("s_nop 7")
    for dt in range(8):
        for k in range(0, 16, 2):
            e(f"v_pk_mul_f32 {vr(O0+16*dt+k,2)}, {vr(O0+16*dt+k,2)}, {vr(vF,2)} op_sel_hi:[1,0]")
        for k in range(8):
            e(f"v_cvt_pk_bf16_f32 v{Q0+8*dt+k}, v{O0+16*dt+2*k}, v{O0+16*dt+2*k+1}")
    e("s_nop 1")
    stamp_keep = list(e.q)
    opA = mf_oproj(32, 0); opB = mf_oproj(0, 32768)
    fill = {26: [f"v_add_u32 v{vAV}, {2*PAIR}, v{vAV}", f"v_add_u32 v{vAK}, {2*PAIR}, v{vAK}"],
            10: [f"s_mov_b32 s{sCNT}, 3", f"s_mov_b32 s{sDELTA}, {(-2*PAIR) & 0xffffffff}"]}
    emit_block(e, cfg, "o0", op0, opA, fill, "oA")
    q_entry = list(e.q)
    def store_fill(acc, S, g0):
        items = []
        items.append([f"s_lshl_b32 s{sT0}, s{sCH}, 12", f"s_add_u32 s{sT0}, s{sT0}, s{sSTB}",
                      f"s_add_u32 s{sCH}, s{sCH}, 1"])
        items.append([f"s_cmp_eq_u32 s{sCH}, 7", f"s_cselect_b32 s{sCH}, 0, s{sCH}"])
        for p in range(4):
            b = acc + 8*p
            cv = [f"v_cvt_pk_bf16_f32 v{S+4*p+k}, v{b+2*k}, v{b+2*k+1}" for k in range(4)]
            items.append(cv[:2]); items.append(cv[2:])
            items.append([f"buffer_store_dwordx4 {vr(S+4*p,4)}, v{vTHR}, {sr(sWS)}, s{sT0} offen offset:{p*1024} {cfg.st_flags}"])
        return {g0+i: it for i, it in enumerate(items)}
    e(".p2align 3\nLA_op:")
    fill = store_fill(0, SA, 2)
    emit_block(e, cfg, "oA", opA, opB, fill, "oB")
    fill = store_fill(32, SB, 2)
    fill[26] = [f"v_add_u32 v{vAV}, s{sDELTA}, v{vAV}", f"v_add_u32 v{vAK}, s{sDELTA}, v{vAK}", f"s_sub_u32 s{sDELTA}, 0, s{sDELTA}"]
    fill[30] = [f"s_sub_u32 s{sCNT}, s{sCNT}, 1"]
    fill[31] = [f"s_cmp_lg_u32 s{sCNT}, 0"]
    emit_block(e, cfg, "oB", opB, opA, fill, "oA")
    assert e.q == q_entry
    e("s_cbranch_scc1 LA_op")
    e("s_nop 7")
    fill = store_fill(0, SA, 0)
    for g in sorted(fill):
        for x in fill[g]: e(x)
    if cfg.stamps:
        stamp()
        e("s_waitcnt vmcnt(0)")
        stamp()
        n = nst[0]
        for i in range(8): e(f"v_mov_b32 v{i}, s{72+i}" if i < n else f"v_mov_b32 v{i}, 0")
        e(f"s_lshl_b32 s{sT0}, s2, 3\ns_add_u32 s{sT0}, s{sT0}, s{sWAVE}\ns_lshl_b32 s{sT0}, s{sT0}, 5\ns_add_u32 s{sT0}, s{sT0}, 0x8000000")
        e(f"v_mov_b32 v8, 0\ns_mov_b64 exec, 1")
        e(f"buffer_store_dwordx4 v[0:3], v8, {sr(sWS)}, s{sT0} offen\nbuffer_store_dwordx4 v[4:7], v8, {sr(sWS)}, s{sT0} offen offset:16")
    e("s_endpgm")
    for site in range(3):
        e(f"LA_rareA{site}:")
        e(f"""v_mov_b32 v{vT}, v{vMX}
s_nop 1
v_permlane32_swap_b32 v{vT}, v{vMX}
v_max_f32 v{vMX}, v{vMX}, v{vT}
v_mul_f32 v{vT}, {hex(f2u(-C_SCALE))}, v{vMX}
v_min_f32 v{vT}, v{vT}, v{vNEG}
v_sub_f32 v{vF}, v{vT}, v{vNEG}
v_exp_f32 v{vF}, v{vF}
v_mov_b32 v{vNEG}, v{vT}
v_mul_f32 v{vL}, v{vL}, v{vF}
v_mul_f32 v{vT}, {hex(f2u(-1.0 / C_SCALE))}, v{vT}
v_add_f32 v{vTHR}, {hex(f2u(cfg.T / C_SCALE))}, v{vT}
s_branch LA_retA{site}""")
        e(f"LA_rareB{site}:")
        e("s_nop 15")
        for k in range(0, 128, 2):
            e(f"v_pk_mul_f32 {vr(O0+k,2)}, {vr(O0+k,2)}, {vr(vF,2)} op_sel_hi:[1,0]")
        e(f"s_nop 1\ns_branch LA_retB{site}")

    e(".p2align 6\nLA_helper:")
    if cfg.prio_h: e(f"s_setprio {cfg.prio_h}")
    vKV, vW, vXX, vO = 2, 3, 4, 5
    e(f"s_sub_u32 s{sWAVE}, s{sWAVE}, 4")
    e(f"""v_lshrrev_b32 v6, 5, v0
v_and_b32 v7, 31, v0
v_lshlrev_b32 v7, 4, v7
v_lshl_add_u32 v{vKV}, v6, 13, v7
v_lshl_add_u32 v{vW}, v6, 17, v7
v_bfe_u32 v8, v0, 3, 2
v_lshl_add_u32 v8, v8, 1, v6
v_mul_u32_u24 v{vXX}, {16*896}, v8
v_and_b32 v9, 7, v0
v_lshl_add_u32 v{vXX}, v9, 4, v{vXX}
v_cmp_eq_u32 vcc, 7, v8
v_mov_b32 v10, 0x70000000
s_nop 0
v_cndmask_b32 v{vXX}, v{vXX}, v10, vcc
v_lshrrev_b32 v8, 3, v0
v_mul_u32_u24 v{vO}, 896, v8
v_bfe_u32 v8, v0, 4, 1
v_lshlrev_b32 v8, 2, v8
v_xor_b32 v8, v8, v9
v_lshl_add_u32 v{vO}, v8, 4, v{vO}""")
    e(f"""s_mul_i32 s{sLK}, s{sWAVE}, {4*KST}
s_mul_i32 s{sLV}, s{sWAVE}, {4*VST}
s_lshl_b32 s{sLO}, s{sWAVE}, 13
s_lshl_b32 s{sWOFF}, s{sH}, 9
s_lshl_b32 s{sT0}, s{sWAVE}, 15
s_add_u32 s{sWOFF}, s{sWOFF}, s{sT0}
s_mul_i32 s{sXOFF}, s{sB}, 224
s_mul_i32 s{sT0}, s{sHALF}, 112
s_add_u32 s{sXOFF}, s{sXOFF}, s{sT0}
s_lshl_b32 s{sT0}, s{sWAVE}, 2
s_add_u32 s{sXOFF}, s{sXOFF}, s{sT0}
s_mul_i32 s{sXOFF}, s{sXOFF}, 896
s_lshl_b32 s{sKVOFF}, s{sB}, 4
s_add_u32 s{sKVOFF}, s{sKVOFF}, s{sH}
s_lshl_b32 s{sKVOFF}, s{sKVOFF}, 19
s_lshl_b32 s{sT0}, s{sWAVE}, 11
s_add_u32 s{sKVOFF}, s{sKVOFF}, s{sT0}
s_lshl_b32 s{sOOFF}, s{sH}, 8
s_lshl_b32 s{sT0}, s{sWAVE}, 6
s_add_u32 s{sOOFF}, s{sOOFF}, s{sT0}
s_mul_i32 s{sOOFF}, s{sOOFF}, 896
s_mov_b32 s{sCH}, s{sROT}""")
    def dma(srd, voff, sreg, simm, mreg, mimm, nt=False):
        e(f"s_add_u32 m0, s{mreg}, {mimm}\ns_add_u32 s{sT0}, s{sreg}, {simm}\nbuffer_load_dwordx4 v{voff}, {sr(srd)}, s{sT0} offen {'nt ' if nt else ''}lds")
    def adv_ch():
        e(f"s_add_u32 s{sCH}, s{sCH}, 1\ns_cmp_eq_u32 s{sCH}, 7\ns_cselect_b32 s{sCH}, 0, s{sCH}")
    kv_in_loop = [False]
    def issue(n, kvbase=0):
        if n <= 6:
            sl = (n + 2) % 3
            e(f"s_lshl_b32 s{sT1}, s{sCH}, 7\ns_add_u32 s{sT1}, s{sT1}, s{sXOFF}\ns_lshl_b32 s{sT2}, s{sCH}, 19\ns_add_u32 s{sT2}, s{sT2}, s{sWOFF}")
            for j in range(4): dma(sX, vXX, sT1, j*896, sLK, XBASE + sl*XT + j*KST)
            for a in range(2):
                for j in range(4): dma(sWQ, vW, sT2, (32*a + j)*8192, sLV, sl*PAIR + a*HALF + j*VST)
            adv_ch()
            return 12
        sl = (n + 1) % 4
        if n <= 39:
            i = n - 8; c = 0
            if i + 1 <= 31:
                for j in range(4): dma(sK, vKV, sKVOFF, (i+1-kvbase)*16384 + j*512, sLK, sl*PAIR + j*KST, cfg.nt_kv)
                c += 4
            if i >= 0:
                for j in range(4): dma(sV, vKV, sKVOFF, (i-kvbase)*16384 + j*512, sLV, sl*PAIR + HALF + j*VST, cfg.nt_kv)
                c += 4
            return c
        e(f"s_lshl_b32 s{sT1}, s{sCH}, 7\ns_add_u32 s{sT1}, s{sT1}, s{sOOFF}")
        for j in range(8): dma(sWO, vO, sT1, j*8*896, sLO, sl*PAIR + (0 if sl % 2 else PAIR-32768) + j*1024)
        adv_ch()
        return 8
    out = []
    def do_issue(n, kvbase=0): out.append((n, issue(n, kvbase)))
    def wait_step(n):
        while out and out[0][0] <= n: out.pop(0)
        e(f"s_waitcnt vmcnt({sum(c for _, c in out)})")
    do_issue(0)
    e("s_getpc_b64 s[68:69]\nLA_pc:")
    e(f"s_sub_u32 s68, s68, LA_pc-{KA}\ns_subb_u32 s69, s69, 0")
    e(f"v_lshlrev_b32 v11, 7, v0\ns_lshl_b32 s{sT0}, s{sWAVE}, 13\nv_add_u32 v11, s{sT0}, v11\nv_min_u32 v11, LB_endoftext-{KA}-4, v11")
    e("global_load_dword v12, v11, s[68:69]")
    out.append((1, 1))
    do_issue(1); do_issue(2)
    sched = {1:[3],2:[4],3:[5],4:[6],5:[7],6:[8],7:[9,10]}
    for n in range(0, 8):
        wait_step(n); e("s_barrier")
        for s_ in sched.get(n, []): do_issue(s_)
    e(f"s_mov_b32 s{sCNT}, 7")
    e("LA_hloop:")
    entry = [c for _, c in out]
    for n in range(8, 12):
        wait_step(n); e("s_barrier"); do_issue(n+3)
    assert [c for _, c in out] == entry
    e(f"s_add_u32 s{sKVOFF}, s{sKVOFF}, {4*16384}\ns_sub_u32 s{sCNT}, s{sCNT}, 1\ns_cmp_lg_u32 s{sCNT}, 0\ns_cbranch_scc1 LA_hloop")
    out = [(s_ + 24, c) for s_, c in out]
    e(f"s_mov_b32 s{sCH}, s{sROT}")
    for n in range(36, 48):
        if n <= 46: wait_step(n)
        e("s_barrier")
        if n + 3 <= 46: do_issue(n+3, kvbase=28)
    e("LA_end:\ns_endpgm")

    e.L.append(f".globl {KB}\n.p2align 8\n.type {KB},@function\n{KB}:")
    e("s_cmp_ge_u32 s2, 256\ns_cbranch_scc1 LB_end")
    e("s_load_dwordx2 s[4:5], s[0:1], 40\ns_load_dwordx2 s[6:7], s[0:1], 56")
    e("v_lshrrev_b32 v1, 6, v0\nv_and_b32 v0, 63, v0\nv_readfirstlane_b32 s16, v1")
    e("""s_lshr_b32 s17, s2, 4
s_bfe_u32 s18, s2, 0x20002
s_and_b32 s19, s2, 3
s_mul_i32 s19, s19, 7
s_add_u32 s19, s19, s16
s_lshl_b32 s20, s17, 6
s_add_u32 s20, s20, s18
s_mul_i32 s20, s20, 28
s_add_u32 s20, s20, s19
s_lshl_b32 s20, s20, 10
s_cmp_eq_u32 s18, 3
s_cselect_b32 s21, 0x70000000, 0
v_bfe_u32 v2, v0, 4, 1
v_mul_lo_u32 v2, v2, s21
v_lshl_add_u32 v1, v0, 4, v2
s_waitcnt lgkmcnt(0)
s_mov_b32 s8, s6
s_mov_b32 s9, s7
s_mov_b32 s10, 0x10000000
s_mov_b32 s11, 0x20000
s_mov_b32 s12, s4
s_mov_b32 s13, s5
s_mov_b32 s14, 1605632
s_mov_b32 s15, 0x20000""")
    for h in range(16):
        e(f"buffer_load_dwordx4 {vr(16+4*h,4)}, v1, s[8:11], s20 offen {cfg.rd_flags}")
        if h < 15: e(f"s_add_u32 s20, s20, {4*28*1024}")
    e("""s_mul_i32 s22, s17, 112
s_lshl_b32 s23, s18, 5
s_add_u32 s22, s22, s23
s_mul_i32 s22, s22, 896
s_lshl_b32 s23, s19, 5
s_add_u32 s22, s22, s23
v_and_b32 v3, 31, v0
v_mul_u32_u24 v3, 896, v3
v_lshrrev_b32 v4, 5, v0
v_lshl_add_u32 v3, v4, 4, v3
v_add_u32 v3, v3, v2""")
    for h in range(16):
        e(f"s_waitcnt vmcnt({15-h})")
        for k in range(4):
            r = 16 + 4*h + k
            if h == 0:
                e(f"v_lshlrev_b32 v{8+2*k}, 16, v{r}\nv_and_b32 v{9+2*k}, 0xffff0000, v{r}")
            else:
                e(f"v_lshlrev_b32 v5, 16, v{r}\nv_and_b32 v6, 0xffff0000, v{r}\nv_add_f32 v{8+2*k}, v{8+2*k}, v5\nv_add_f32 v{9+2*k}, v{9+2*k}, v6")
    for k in range(4): e(f"v_cvt_pk_bf16_f32 v{16+k}, v{8+2*k}, v{9+2*k}")
    e("buffer_store_dwordx4 v[16:19], v3, s[12:15], s22 offen")
    e("LB_end:\ns_endpgm\nLB_endoftext:")
    def kd(name, vg):
        return f""".amdhsa_kernel {name}
  .amdhsa_next_free_vgpr {vg}
  .amdhsa_next_free_sgpr 96
  .amdhsa_accum_offset {vg}
  .amdhsa_group_segment_fixed_size 0
  .amdhsa_kernarg_size 64
  .amdhsa_user_sgpr_count 2
  .amdhsa_user_sgpr_kernarg_segment_ptr 1
  .amdhsa_system_sgpr_workgroup_id_x 1
.end_amdhsa_kernel
"""
    return hdr + "\n" + "\n".join(e.L) + '\n.section .rodata,"a"\n.p2align 6\n' + kd(KA, 256) + ".p2align 6\n" + kd(KB, 80)

if __name__ == "__main__":
    cfg = Cfg()
    for a in sys.argv[2:]:
        k, v = a.split("=")
        cur = getattr(cfg, k)
        setattr(cfg, k, type(cur)(eval(v)) if not isinstance(cur, str) else v.replace("+", " "))
    open(sys.argv[1], "w").write(gen(cfg))
```

```python
import sys, math, struct

def f2u(x): return struct.unpack("<I", struct.pack("<f", x))[0]

class Cfg:
    nt_kv = True
    st_flags = ""
    rd_flags = ""
    stamps = False
    wait_every = 2
    T = 16.0
    prio_c = 0
    prio_h = 0
    formal = True
    nokv = False

PAIR = 34816; HALF = 17408; KST = 1040; VST = 1088
XBASE = 3 * PAIR; XT = 16640
LDS_BYTES = 163840
C_SCALE = math.log2(math.e) / 16.0

O0 = 0; Q0 = 128; SA = 192; SB = 208; F0 = 224
vAK = 248; vAV = 249; vNEG = 250; vTHR = 251; vL = 252; vMX = 253; vF = 254; vT = 255
sX, sK, sV, sWQ, sWO, sWS = 20, 24, 28, 32, 36, 40
sWAVE, sB, sH, sHALF, sROT = 44, 45, 46, 47, 48
sC = 49
sT0, sT1, sT2, sT3 = 50, 51, 52, 53
sCNT = 54; sDELTA = 55; sIDX = 56; sD2 = 57; sSTB = 58; sCH = 59
sLK, sLV, sLO = 60, 61, 62
sWOFF, sXOFF, sKVOFF, sOOFF = 63, 64, 65, 66
sSTAMP = 70

def vr(a, n): return f"v[{a}:{a+n-1}]"
def sr(a, n=4): return f"s[{a}:{a+n-1}]"

class Em:
    def __init__(self):
        self.L = []
        self.q = []
    def __call__(self, s):
        for l in s.split("\n"):
            self.L.append("    " + l if not l.endswith(":") else l)
    def ds(self, s, tag):
        self(s); self.q.append(tag)
        assert len(self.q) <= 15, "lgkmcnt overflow"
    def wait(self, tags):
        idx = -1
        for i, t in enumerate(self.q):
            if t in tags: idx = i
        if idx < 0: return False
        n = len(self.q) - 1 - idx
        self(f"s_waitcnt lgkmcnt({n})")
        self.q = self.q[idx+1:]
        return True
    def waitall(self):
        self("s_waitcnt lgkmcnt(0)"); self.q = []

def bufseq(n):
    if n == 32: return [0,1,2,3,4]*4 + [0,1,2,3,4,5]*2
    if n == 16: return [0,1,2,3] + [0,1,2,3,4,5]*2
    raise

class MF:
    def __init__(self, d, b, c, loads, extra_tags=()):
        self.d, self.b, self.c, self.loads, self.extra = d, b, c, loads, tuple(extra_tags)

def kload(off):
    return [lambda f, off=off: f"ds_read_b128 {vr(f,4)}, v{vAK} offset:{off}"]
def trload(areg, off0, off1):
    return [lambda f, o=off0: f"ds_read_b64_tr_b16 {vr(f,2)}, v{areg} offset:{o}",
            lambda f, o=off1: f"ds_read_b64_tr_b16 {vr(f+2,2)}, v{areg} offset:{o}"]

def mf_qk(Y, base):
    return [MF(vr(Y,16), vr(Q0+4*s,4), "0" if s == 0 else vr(Y,16), kload(base + s*32)) for s in range(16)]
def mf_pv(X, base, first=False):
    r = []
    for t in range(2):
        for dt in range(8):
            o = base + t*512 + dt*64
            r.append(MF(vr(O0+16*dt,16), vr(X+4*t,4), "0" if (first and t == 0) else vr(O0+16*dt,16), trload(vAV, o, o + 8*VST)))
    return r
def mf_qproj():
    r = []
    for a in range(2):
        for t in range(2):
            for dt in range(8):
                o = a*HALF + t*512 + dt*64
                r.append(MF(vr(O0+16*dt,16), vr(SB+4*(a*2+t),4), vr(O0+16*dt,16), trload(vAV, o, o + 4*VST), extra_tags=[f"x{a*2+t}"]))
    return r
def mf_oproj(acc, base):
    r = []
    for ks in range(16):
        for nt in range(2):
            o = base + (16*ks) * 128
            r.append(MF(vr(acc+16*nt,16), vr(Q0+4*ks,4), "0" if ks == 0 else vr(acc+16*nt,16), trload(vAK if nt == 0 else vAV, o, o + 8*128)))
    return r

def emit_block(e, cfg, name, mfs, nxt, fill, nxtname, barrier=True, pre_issued=5, post_barrier=None):
    n = len(mfs)
    if n == 32:
        seq = [0,1,2,3,4]*4 + [0,1,2,3,4,5]*2
        ig = {m: (m-5 if m <= 24 else m-6) for m in range(n)}
    else:
        seq = [0,1,2,3,4] + [0,1,2,3,4] + [0,1,2,3,4,5]
        ig = {m: m-5 for m in range(n)}
        ig[15] = 9
    bar_gap = n - 5
    def issue(mf, buf, tag):
        for ld in mf.loads: e.ds(ld(F0 + 4*buf), tag)
    for m in range(n):
        mf = mfs[m]
        tags = {(name, m)} | set(mf.extra)
        if cfg.wait_every == 2:
            if m % 2 == 0 and m + 1 < n: tags |= {(name, m+1)} | set(mfs[m+1].extra)
        e.wait(tags)
        e(f"v_mfma_f32_32x32x16_bf16 {mf.d}, {vr(F0+4*seq[m],4)}, {mf.b}, {mf.c}")
        for mm in range(pre_issued, n):
            if ig[mm] == m: issue(mfs[mm], seq[mm], (name, mm))
        if nxt is not None and m > bar_gap:
            k = m - bar_gap
            lst = [0, 1] if k == 1 else [k]
            for mm in lst: issue(nxt[mm], mm, (nxtname, mm))
            if post_barrier and k in post_barrier:
                for it in post_barrier[k]: e.ds(*it)
        for it in fill.get(m, []):
            if isinstance(it, tuple): e.ds(*it)
            else: e(it)
        if m == bar_gap and barrier:
            if cfg.formal: e.waitall()
            e("s_barrier")

def rename(e, old, new):
    e.q = [((new, t[1]) if isinstance(t, tuple) and t[0] == old else t) for t in e.q]

def softmax_ops(X):
    ops = []
    for step in range(16 + 3):
        if step < 16: ops.append((1, f"v_fma_f32 v{X+step}, v{X+step}, s{sC}, v{vNEG}"))
        e1 = step - 1
        if 0 <= e1 < 16: ops.append((2, f"v_exp_f32 v{X+e1}, v{X+e1}"))
        e2 = step - 2
        if 0 <= e2 < 16:
            if step >= 17: ops.append((1, "s_nop 0"))
            ops.append((1, f"v_add_f32 v{vL}, v{vL}, v{X+e2}"))
        e3 = step - 3
        if 0 <= e3 < 16 and e3 % 2 == 1:
            k = e3 // 2
            ops.append((1, f"v_cvt_pk_bf16_f32 v{X+k}, v{X+2*k}, v{X+2*k+1}"))
    return ops

def max_ops(Y):
    ops = [f"v_max3_f32 v{vMX}, v{Y}, v{Y+1}, v{Y+2}"]
    for i in range(6): ops.append(f"v_max3_f32 v{vMX}, v{vMX}, v{Y+3+2*i}, v{Y+4+2*i}")
    ops.append(f"v_max_f32 v{vMX}, v{vMX}, v{Y+15}")
    return ops

def distribute(ops, gaps, budgets, fill):
    i = 0
    for g, b in zip(gaps, budgets):
        used = 0
        while i < len(ops) and used + ops[i][0] <= b:
            fill.setdefault(g, []).append(ops[i][1]); used += ops[i][0]; i += 1
    return ops[i:]

TAIL_GAPS = [22,23,24,25,26,27,28,29,30,31]
TAIL_BUD  = [3, 3, 3, 3, 5, 3, 3, 4, 4, 3]
HEAD_GAPS = list(range(0, 15))
HEAD_BUD  = [4,4,4,4,4,4,4,4,4,4,3,3,3,3,3]

def gen(cfg):
    e = Em()
    KA = "mha_main_kernel"; KB = "mha_reduce_kernel"
    hdr = f"""; fused MHA block: kernel A = Qproj + attention + out-proj partials, kernel B = head reduction
; @launch kernel={KA} grid=(256,1,1) block=(512,1,1) lds={LDS_BYTES}
; @launch kernel={KB} grid=(256,1,1) block=(448,1,1) lds=0
.amdgcn_target "amdgcn-amd-amdhsa--gfx950"
.text
.globl {KA}
.p2align 8
.type {KA},@function
{KA}:"""
    nst = [0]
    def stamp():
        if not cfg.stamps: return
        i = nst[0]; nst[0] += 1
        e(f"s_memrealtime s[{sSTAMP}:{sSTAMP+1}]\ns_memtime s[90:91]\ns_waitcnt lgkmcnt(0)\ns_mov_b32 s{72+i}, s{sSTAMP}\ns_mov_b32 s{80+i}, s90")
        e.q = []
    e("s_cmp_ge_u32 s2, 256\ns_cbranch_scc1 LA_end")
    e("s_load_dwordx16 s[4:19], s[0:1], 0")
    e("v_lshrrev_b32 v1, 6, v0\nv_and_b32 v0, 63, v0")
    e(f"v_readfirstlane_b32 s{sWAVE}, v1")
    e(f"""s_and_b32 s{sT0}, s2, 7
s_lshr_b32 s{sT1}, s2, 3
s_and_b32 s{sHALF}, s{sT1}, 1
s_lshr_b32 s{sT1}, s{sT1}, 1
s_lshr_b32 s{sT2}, s{sT1}, 2
s_and_b32 s{sT3}, s{sT1}, 3
s_lshr_b32 s{sB}, s{sT0}, 2
s_lshl_b32 s{sB}, s{sB}, 2
s_add_u32 s{sB}, s{sB}, s{sT2}
s_and_b32 s{sH}, s{sT0}, 3
s_lshl_b32 s{sH}, s{sH}, 2
s_add_u32 s{sH}, s{sH}, s{sT3}
s_add_u32 s{sROT}, s{sT2}, s{sT3}
s_lshl_b32 s{sROT}, s{sROT}, 1
s_add_u32 s{sROT}, s{sROT}, s{sHALF}
s_sub_u32 s{sT0}, s{sROT}, 7
s_cmp_ge_u32 s{sROT}, 7
s_cselect_b32 s{sROT}, s{sT0}, s{sROT}""")
    e("s_waitcnt lgkmcnt(0)")
    for srd, p, nb in ((sX,4,1605632),(sK,6,67108864),(sV,8,67108864),(sWQ,10,3670016),(sWO,12,3670016),(sWS,18,268435456)):
        e(f"s_mov_b32 s{srd}, s{p}\ns_mov_b32 s{srd+1}, s{p+1}\ns_mov_b32 s{srd+2}, {nb}\ns_mov_b32 s{srd+3}, 0x20000")
    e(f"s_cmp_ge_u32 s{sWAVE}, 4\ns_cbranch_scc1 LA_helper")

    if cfg.prio_c: e(f"s_setprio {cfg.prio_c}")
    stamp()
    lane = vT
    e(f"v_mov_b32 v{lane}, v0")
    e(f"s_mov_b32 s{sC}, {hex(f2u(C_SCALE))}")
    t = SA
    def lane_fields():
        e(f"""v_lshrrev_b32 v{t}, 5, v{lane}
v_bfe_u32 v{t+1}, v{lane}, 2, 2
v_bfe_u32 v{t+2}, v{lane}, 4, 1
v_and_b32 v{t+3}, 3, v{lane}
v_and_b32 v{t+4}, 1, v{lane}
v_lshlrev_b32 v{t+4}, 1, v{t+4}
v_bfe_u32 v{t+5}, v{lane}, 1, 1
v_or_b32 v{t+4}, v{t+4}, v{t+5}
v_and_b32 v{t+5}, 15, v{lane}""")
    lane_fields()
    e(f"""v_lshl_add_u32 v{t+6}, v{t}, 3, v{t+1}
v_mul_u32_u24 v{vAV}, {VST}, v{t+6}
v_lshl_add_u32 v{vAV}, v{t+2}, 5, v{vAV}
v_lshl_add_u32 v{vAV}, v{t+4}, 3, v{vAV}
v_add_u32 v{vAV}, {2*PAIR}, v{vAV}""")
    e(f"""v_mul_u32_u24 v{vMX}, {KST}, v{t+5}
v_lshl_add_u32 v{vMX}, v{t+2}, 9, v{vMX}
v_lshl_add_u32 v{vMX}, v{t}, 4, v{vMX}""")
    e(f"s_lshl_b32 s{sT0}, s{sWAVE}, 7\ns_add_u32 s{sT0}, s{sT0}, {XBASE + 2*XT}\nv_add_u32 v{vAK}, s{sT0}, v{vMX}")
    e(f"""v_lshl_add_u32 v{t+6}, v{t}, 2, v{t+1}
v_mul_u32_u24 v{vF}, {VST}, v{t+6}
v_lshl_add_u32 v{vF}, v{t+2}, 5, v{vF}
v_lshl_add_u32 v{vF}, v{t+3}, 3, v{vF}
v_add_u32 v{vF}, {HALF}, v{vF}""")
    for i in range(0, 128, 2): e(f"v_mov_b64 {vr(i,2)}, 0")
    e(f"s_mov_b32 s{sCNT}, 7\ns_mov_b32 s{sIDX}, 2")
    e("s_barrier")
    stamp()
    qp = mf_qproj()
    def xload(i): return (f"ds_read_b128 {vr(SB+4*i,4)}, v{vAK} offset:{i*32}", f"x{i}")
    for mm in (0, 1):
        for ld in qp[mm].loads: e.ds(ld(F0+4*mm), ("qp", mm))
    e.ds(*xload(0))
    for mm in (2, 3, 4):
        for ld in qp[mm].loads: e.ds(ld(F0+4*mm), ("qp", mm))
    q_entry = list(e.q)
    e(".p2align 3\nLA_qp:")
    fill = {
        1: [xload(1)], 8: [xload(2)], 16: [xload(3)],
        20: [f"s_add_u32 s{sIDX}, s{sIDX}, 1", f"s_cmp_eq_u32 s{sIDX}, 3"],
        21: [f"s_cselect_b32 s{sDELTA}, {(-2*PAIR) & 0xffffffff}, {PAIR}" if False else f"s_cselect_b32 s{sIDX}, 0, s{sIDX}",
             f"s_cselect_b32 s{sDELTA}, -2, 1"],
        22: [f"s_mul_i32 s{sD2}, s{sDELTA}, {XT}", f"s_mul_i32 s{sDELTA}, s{sDELTA}, {PAIR}"],
        26: [f"v_add_u32 v{vAV}, s{sDELTA}, v{vAV}", f"v_add_u32 v{vAK}, s{sD2}, v{vAK}", f"s_sub_u32 s{sCNT}, s{sCNT}, 1"],
        31: [f"s_cmp_lg_u32 s{sCNT}, 0"],
    }
    emit_block(e, cfg, "qp", qp, qp, fill, "qpn", post_barrier={1: [xload(0)]})
    rename(e, "qpn", "qp")
    assert e.q == q_entry, (e.q, q_entry)
    e("s_cbranch_scc1 LA_qp")
    stamp()
    rename(e, "qp", "junk")
    e(f"v_mov_b32 v{vAK}, v{vMX}\nv_mov_b32 v{vAV}, v{vF}")
    qk0 = mf_qk(SA, 0)
    e.waitall()
    for mm in range(5):
        for ld in qk0[mm].loads: e.ds(ld(F0+4*mm), ("qk0", mm))
    def qcvt(s):
        b = O0 + 16*(s >> 1) + 8*(s & 1)
        return [f"v_cvt_pk_bf16_f32 v{Q0+4*s+k}, v{b+2*k}, v{b+2*k+1}" for k in range(4)]
    for s in range(2):
        for x in qcvt(s): e(x)
    fill = {g: qcvt(g+2) for g in range(14)}
    st8 = mf_qk(SB, PAIR) + mf_pv(SA, PAIR, first=True)
    emit_block(e, cfg, "qk0", qk0, st8, fill, "m")
    def tail_fill(fill, Y, site):
        mo = max_ops(Y)
        fill.setdefault(18, []).extend(mo[0:3]); fill.setdefault(19, []).extend(mo[3:4]); fill.setdefault(20, []).extend(mo[4:7])
        fill.setdefault(21, []).extend(mo[7:8] + [f"v_cmp_gt_f32 vcc, v{vMX}, v{vTHR}"])
        fill.setdefault(22, []).extend([f"s_cbranch_vccnz LA_rareA{site}", f"LA_retA{site}:"])
        rem = distribute(softmax_ops(Y), TAIL_GAPS, TAIL_BUD, fill)
        fill.setdefault(31, []).extend([f"s_cbranch_vccnz LA_rareB{site}", f"LA_retB{site}:"])
        return len(rem)
    ntail_rem = None
    fill = {}
    init = [(1, x) for x in max_ops(SA)] + [(1, f"v_mov_b32 v{vT}, v{vMX}"), (1, f"v_mov_b32 v{vL}, 0"), (1, "s_nop 0"),
            (1, f"v_permlane32_swap_b32 v{vT}, v{vMX}"), (1, f"v_max_f32 v{vMX}, v{vMX}, v{vT}"),
            (1, f"v_mul_f32 v{vNEG}, {hex(f2u(-C_SCALE))}, v{vMX}"), (1, f"v_add_f32 v{vTHR}, {hex(f2u(cfg.T / C_SCALE))}, v{vMX}")]
    fill[0] = ["s_nop 7"]
    rem = distribute(init + softmax_ops(SA), list(range(1, 15)), [7]*14, fill)
    assert not rem, rem
    fill.setdefault(15, []).append(f"v_add_u32 v{vAK}, {2*PAIR}, v{vAK}")
    fill[15].append(f"s_mov_b32 s{sCNT}, 15"); fill[15].append(f"s_mov_b32 s{sDELTA}, {(-2*PAIR) & 0xffffffff}")
    ntail_rem = tail_fill(fill, SB, 0)
    fill.setdefault(27, []).append(f"v_add_u32 v{vAV}, {2*PAIR}, v{vAV}")
    lA = mf_qk(SA, 0) + mf_pv(SB, 0)
    lB = mf_qk(SB, PAIR) + mf_pv(SA, PAIR)
    emit_block(e, cfg, "m", st8, lA, fill, "mA")
    q_entry = list(e.q)
    stamp_q = list(e.q)
    e(".p2align 3\nLA_main:")
    def head_fill(X):
        fill = {}
        ops = softmax_ops(X)
        ops = ops[len(ops)-ntail_rem:]
        rem = distribute(ops, HEAD_GAPS, HEAD_BUD, fill)
        assert not rem, rem
        return fill
    fill = head_fill(SB); tail_fill(fill, SA, 1)
    emit_block(e, cfg, "mA", lA, lB, fill, "mB")
    fill = head_fill(SA)
    fill.setdefault(15, []).append(f"v_add_u32 v{vAK}, s{sDELTA}, v{vAK}")
    fill.setdefault(16, []).append(f"s_sub_u32 s{sCNT}, s{sCNT}, 1")
    tail_fill(fill, SB, 2)
    fill.setdefault(27, []).insert(0, f"v_add_u32 v{vAV}, s{sDELTA}, v{vAV}")
    fill.setdefault(28, []).append(f"s_sub_u32 s{sDELTA}, 0, s{sDELTA}")
    fill.setdefault(31, []).append(f"s_cmp_lg_u32 s{sCNT}, 0")
    emit_block(e, cfg, "mB", lB, lA, fill, "mA")
    assert e.q == q_entry, (e.q, q_entry)
    e("s_cbranch_scc1 LA_main")
    stamp()
    rename(e, "mA", "junk")
    pvl = mf_pv(SB, 0)
    e.waitall()
    for mm in range(5):
        for ld in pvl[mm].loads: e.ds(ld(F0+4*mm), ("pvl", mm))
    ops = softmax_ops(SB); ops = ops[len(ops)-ntail_rem:]
    for c_, x in ops: e(x)
    e("s_nop 1")
    t = SA
    fill = {}
    fill[0] = [f"v_mov_b32 v{vT}, v{vL}", f"v_mbcnt_lo_u32_b32 v{vMX}, -1, 0", f"v_mbcnt_hi_u32_b32 v{vMX}, -1, v{vMX}"]
    fill[1] = [f"v_permlane32_swap_b32 v{vT}, v{vL}", f"v_add_f32 v{vL}, v{vL}, v{vT}", f"v_rcp_f32 v{vF}, v{vL}"]
    ln = vMX
    fill[2] = f"""v_lshrrev_b32 v{t}, 5, v{ln}
v_bfe_u32 v{t+1}, v{ln}, 2, 2
v_bfe_u32 v{t+2}, v{ln}, 4, 1""".split("\n")
    fill[3] = f"""v_and_b32 v{t+4}, 1, v{ln}
v_lshlrev_b32 v{t+4}, 1, v{t+4}
v_bfe_u32 v{t+5}, v{ln}, 1, 1""".split("\n")
    fill[4] = f"""v_or_b32 v{t+4}, v{t+4}, v{t+5}
v_lshl_add_u32 v{t+6}, v{t}, 2, v{t+1}
v_lshlrev_b32 v{t+6}, 7, v{t+6}""".split("\n")
    fill[5] = f"""v_lshl_add_u32 v{t+6}, v{t+2}, 5, v{t+6}
v_lshl_add_u32 v{t+6}, v{t+4}, 3, v{t+6}
v_bfe_u32 v{t+7}, v{ln}, 3, 1""".split("\n")
    fill[6] = f"""v_lshl_add_u32 v{vAK}, v{t+7}, 6, v{t+6}
v_add_u32 v{vAK}, {PAIR-32768}, v{vAK}
v_xor_b32 v{t+6}, 64, v{vAK}""".split("\n")
    fill[7] = f"""v_lshlrev_b32 v{vTHR}, 4, v{ln}
s_cmp_eq_u32 s{sWAVE}, 3
s_cselect_b32 s{sT0}, 0x70000000, 0""".split("\n")
    fill[8] = f"""v_mul_lo_u32 v{t+7}, v{t+2}, s{sT0}
v_add_u32 v{vTHR}, v{vTHR}, v{t+7}""".split("\n")
    fill[10] = [f"v_mov_b32 v{vAV}, v{t+6}",
                f"s_lshl_b32 s{sT0}, s{sB}, 1", f"s_add_u32 s{sT0}, s{sT0}, s{sHALF}", f"s_lshl_b32 s{sT0}, s{sT0}, 4", f"s_add_u32 s{sT0}, s{sT0}, s{sH}"]
    fill[12] = [f"s_lshl_b32 s{sT0}, s{sT0}, 2", f"s_add_u32 s{sT0}, s{sT0}, s{sWAVE}", f"s_mul_i32 s{sSTB}, s{sT0}, {28*1024}", f"s_mov_b32 s{sCH}, s{sROT}"]
    op0 = mf_oproj(0, 32768)
    emit_block(e, cfg, "pvl", pvl, op0, fill, "o0")
    e("s_nop 7")
    for dt in range(8):
        for k in range(0, 16, 2):
            e(f"v_pk_mul_f32 {vr(O0+16*dt+k,2)}, {vr(O0+16*dt+k,2)}, {vr(vF,2)} op_sel_hi:[1,0]")
        for k in range(8):
            e(f"v_cvt_pk_bf16_f32 v{Q0+8*dt+k}, v{O0+16*dt+2*k}, v{O0+16*dt+2*k+1}")
    e("s_nop 1")
    stamp()
    opA = mf_oproj(32, 0); opB = mf_oproj(0, 32768)
    fill = {26: [f"v_add_u32 v{vAV}, {2*PAIR}, v{vAV}", f"v_add_u32 v{vAK}, {2*PAIR}, v{vAK}"],
            10: [f"s_mov_b32 s{sCNT}, 3", f"s_mov_b32 s{sDELTA}, {(-2*PAIR) & 0xffffffff}"]}
    emit_block(e, cfg, "o0", op0, opA, fill, "oA")
    q_entry = list(e.q)
    def store_fill(acc, S, g0):
        items = []
        items.append([f"s_lshl_b32 s{sT0}, s{sCH}, 12", f"s_add_u32 s{sT0}, s{sT0}, s{sSTB}",
                      f"s_add_u32 s{sCH}, s{sCH}, 1"])
        items.append([f"s_cmp_eq_u32 s{sCH}, 7", f"s_cselect_b32 s{sCH}, 0, s{sCH}"])
        for p in range(4):
            b = acc + 8*p
            cv = [f"v_cvt_pk_bf16_f32 v{S+4*p+k}, v{b+2*k}, v{b+2*k+1}" for k in range(4)]
            items.append(cv[:2]); items.append(cv[2:])
            items.append([f"buffer_store_dwordx4 {vr(S+4*p,4)}, v{vTHR}, {sr(sWS)}, s{sT0} offen offset:{p*1024} {cfg.st_flags}"])
        return {g0+i: it for i, it in enumerate(items)}
    e(".p2align 3\nLA_op:")
    fill = store_fill(0, SA, 2)
    emit_block(e, cfg, "oA", opA, opB, fill, "oB")
    fill = store_fill(32, SB, 2)
    fill[26] = [f"v_add_u32 v{vAV}, s{sDELTA}, v{vAV}", f"v_add_u32 v{vAK}, s{sDELTA}, v{vAK}", f"s_sub_u32 s{sDELTA}, 0, s{sDELTA}"]
    fill[30] = [f"s_sub_u32 s{sCNT}, s{sCNT}, 1"]
    fill[31] = [f"s_cmp_lg_u32 s{sCNT}, 0"]
    emit_block(e, cfg, "oB", opB, opA, fill, "oA")
    assert e.q == q_entry
    e("s_cbranch_scc1 LA_op")
    e("s_nop 7")
    fill = store_fill(0, SA, 0)
    for g in sorted(fill):
        for x in fill[g]: e(x)
    if cfg.stamps:
        stamp()
        e("s_waitcnt vmcnt(0)")
        stamp()
        n = nst[0]
        for i in range(16): e(f"v_mov_b32 v{i}, s{72+i}" if (i % 8) < n else f"v_mov_b32 v{i}, 0")
        e(f"s_lshl_b32 s{sT0}, s2, 3\ns_add_u32 s{sT0}, s{sT0}, s{sWAVE}\ns_lshl_b32 s{sT0}, s{sT0}, 6\ns_add_u32 s{sT0}, s{sT0}, 0x8000000")
        e(f"v_mov_b32 v16, 0\ns_mov_b64 exec, 1")
        for i in range(4): e(f"buffer_store_dwordx4 v[{4*i}:{4*i+3}], v16, {sr(sWS)}, s{sT0} offen offset:{16*i}")
    e("s_endpgm")
    for site in range(3):
        e(f"LA_rareA{site}:")
        e(f"""v_mov_b32 v{vT}, v{vMX}
s_nop 1
v_permlane32_swap_b32 v{vT}, v{vMX}
v_max_f32 v{vMX}, v{vMX}, v{vT}
v_mul_f32 v{vT}, {hex(f2u(-C_SCALE))}, v{vMX}
v_min_f32 v{vT}, v{vT}, v{vNEG}
v_sub_f32 v{vF}, v{vT}, v{vNEG}
v_exp_f32 v{vF}, v{vF}
v_mov_b32 v{vNEG}, v{vT}
v_mul_f32 v{vL}, v{vL}, v{vF}
v_mul_f32 v{vT}, {hex(f2u(-1.0 / C_SCALE))}, v{vT}
v_add_f32 v{vTHR}, {hex(f2u(cfg.T / C_SCALE))}, v{vT}
s_branch LA_retA{site}""")
        e(f"LA_rareB{site}:")
        e("s_nop 15")
        for k in range(0, 128, 2):
            e(f"v_pk_mul_f32 {vr(O0+k,2)}, {vr(O0+k,2)}, {vr(vF,2)} op_sel_hi:[1,0]")
        e(f"s_nop 1\ns_branch LA_retB{site}")

    e(".p2align 6\nLA_helper:")
    if cfg.prio_h: e(f"s_setprio {cfg.prio_h}")
    vKV, vW, vXX, vO = 2, 3, 4, 5
    e(f"s_sub_u32 s{sWAVE}, s{sWAVE}, 4")
    e(f"""v_lshrrev_b32 v6, 5, v0
v_and_b32 v7, 31, v0
v_lshlrev_b32 v7, 4, v7
v_lshl_add_u32 v{vKV}, v6, 13, v7
v_lshl_add_u32 v{vW}, v6, 17, v7
v_bfe_u32 v8, v0, 3, 2
v_lshl_add_u32 v8, v8, 1, v6
v_mul_u32_u24 v{vXX}, {16*896}, v8
v_and_b32 v9, 7, v0
v_lshl_add_u32 v{vXX}, v9, 4, v{vXX}
v_cmp_eq_u32 vcc, 7, v8
v_mov_b32 v10, 0x70000000
s_nop 0
v_cndmask_b32 v{vXX}, v{vXX}, v10, vcc
v_lshrrev_b32 v8, 3, v0
v_mul_u32_u24 v{vO}, 896, v8
v_bfe_u32 v8, v0, 4, 1
v_lshlrev_b32 v8, 2, v8
v_xor_b32 v8, v8, v9
v_lshl_add_u32 v{vO}, v8, 4, v{vO}""")
    e(f"""s_mul_i32 s{sLK}, s{sWAVE}, {4*KST}
s_mul_i32 s{sLV}, s{sWAVE}, {4*VST}
s_lshl_b32 s{sLO}, s{sWAVE}, 13
s_lshl_b32 s{sWOFF}, s{sH}, 9
s_lshl_b32 s{sT0}, s{sWAVE}, 15
s_add_u32 s{sWOFF}, s{sWOFF}, s{sT0}
s_mul_i32 s{sXOFF}, s{sB}, 224
s_mul_i32 s{sT0}, s{sHALF}, 112
s_add_u32 s{sXOFF}, s{sXOFF}, s{sT0}
s_lshl_b32 s{sT0}, s{sWAVE}, 2
s_add_u32 s{sXOFF}, s{sXOFF}, s{sT0}
s_mul_i32 s{sXOFF}, s{sXOFF}, 896
s_lshl_b32 s{sKVOFF}, s{sB}, 4
s_add_u32 s{sKVOFF}, s{sKVOFF}, s{sH}
s_lshl_b32 s{sKVOFF}, s{sKVOFF}, 19
s_lshl_b32 s{sT0}, s{sWAVE}, 11
s_add_u32 s{sKVOFF}, s{sKVOFF}, s{sT0}
s_lshl_b32 s{sOOFF}, s{sH}, 8
s_lshl_b32 s{sT0}, s{sWAVE}, 6
s_add_u32 s{sOOFF}, s{sOOFF}, s{sT0}
s_mul_i32 s{sOOFF}, s{sOOFF}, 896
s_mov_b32 s{sCH}, s{sROT}""")
    def dma(srd, voff, sreg, simm, mreg, mimm, nt=False):
        e(f"s_add_u32 m0, s{mreg}, {mimm}\ns_add_u32 s{sT0}, s{sreg}, {simm}\nbuffer_load_dwordx4 v{voff}, {sr(srd)}, s{sT0} offen {'nt ' if nt else ''}lds")
    def adv_ch():
        e(f"s_add_u32 s{sCH}, s{sCH}, 1\ns_cmp_eq_u32 s{sCH}, 7\ns_cselect_b32 s{sCH}, 0, s{sCH}")
    kv_in_loop = [False]
    def issue(n, kvbase=0):
        if n <= 6:
            sl = (n + 2) % 3
            e(f"s_lshl_b32 s{sT1}, s{sCH}, 7\ns_add_u32 s{sT1}, s{sT1}, s{sXOFF}\ns_lshl_b32 s{sT2}, s{sCH}, 19\ns_add_u32 s{sT2}, s{sT2}, s{sWOFF}")
            for j in range(4): dma(sX, vXX, sT1, j*896, sLK, XBASE + sl*XT + j*KST)
            for a in range(2):
                for j in range(4): dma(sWQ, vW, sT2, (32*a + j)*8192, sLV, sl*PAIR + a*HALF + j*VST)
            adv_ch()
            return 12
        sl = (n + 1) % 4
        if n <= 39:
            i = n - 8; c = 0
            if cfg.nokv and n > 10: return 0
            if i + 1 <= 31:
                for j in range(4): dma(sK, vKV, sKVOFF, (i+1-kvbase)*16384 + j*512, sLK, sl*PAIR + j*KST, cfg.nt_kv)
                c += 4
            if i >= 0:
                for j in range(4): dma(sV, vKV, sKVOFF, (i-kvbase)*16384 + j*512, sLV, sl*PAIR + HALF + j*VST, cfg.nt_kv)
                c += 4
            return c
        e(f"s_lshl_b32 s{sT1}, s{sCH}, 7\ns_add_u32 s{sT1}, s{sT1}, s{sOOFF}")
        for j in range(8): dma(sWO, vO, sT1, j*8*896, sLO, sl*PAIR + (0 if sl % 2 else PAIR-32768) + j*1024)
        adv_ch()
        return 8
    out = []
    def do_issue(n, kvbase=0): out.append((n, issue(n, kvbase)))
    def wait_step(n):
        while out and out[0][0] <= n: out.pop(0)
        e(f"s_waitcnt vmcnt({sum(c for _, c in out)})")
    do_issue(0)
    e("s_getpc_b64 s[68:69]\nLA_pc:")
    e(f"s_sub_u32 s68, s68, LA_pc-{KA}\ns_subb_u32 s69, s69, 0")
    e(f"v_lshlrev_b32 v11, 7, v0\ns_lshl_b32 s{sT0}, s{sWAVE}, 13\nv_add_u32 v11, s{sT0}, v11\nv_min_u32 v11, LB_endoftext-{KA}-4, v11")
    e("global_load_dword v12, v11, s[68:69]")
    out.append((1, 1))
    do_issue(1); do_issue(2)
    sched = {1:[3],2:[4],3:[5],4:[6],5:[7],6:[8],7:[9,10]}
    for n in range(0, 8):
        wait_step(n); e("s_barrier")
        for s_ in sched.get(n, []): do_issue(s_)
    e(f"s_mov_b32 s{sCNT}, 7")
    e("LA_hloop:")
    entry = [c for _, c in out]
    for n in range(8, 12):
        wait_step(n); e("s_barrier"); do_issue(n+3)
    assert cfg.nokv or [c for _, c in out] == entry
    e(f"s_add_u32 s{sKVOFF}, s{sKVOFF}, {4*16384}\ns_sub_u32 s{sCNT}, s{sCNT}, 1\ns_cmp_lg_u32 s{sCNT}, 0\ns_cbranch_scc1 LA_hloop")
    out = [(s_ + 24, c) for s_, c in out]
    e(f"s_mov_b32 s{sCH}, s{sROT}")
    for n in range(36, 48):
        if n <= 46: wait_step(n)
        e("s_barrier")
        if n + 3 <= 46: do_issue(n+3, kvbase=28)
    e("LA_end:\ns_endpgm")

    e.L.append(f".globl {KB}\n.p2align 8\n.type {KB},@function\n{KB}:")
    e("s_cmp_ge_u32 s2, 256\ns_cbranch_scc1 LB_end")
    if cfg.stamps: e("s_memrealtime s[30:31]")
    e("s_load_dwordx2 s[4:5], s[0:1], 40\ns_load_dwordx2 s[6:7], s[0:1], 56")
    e("v_lshrrev_b32 v1, 6, v0\nv_and_b32 v0, 63, v0\nv_readfirstlane_b32 s16, v1")
    e("""s_lshr_b32 s17, s2, 4
s_bfe_u32 s18, s2, 0x20002
s_and_b32 s19, s2, 3
s_mul_i32 s19, s19, 7
s_add_u32 s19, s19, s16
s_lshl_b32 s20, s17, 6
s_add_u32 s20, s20, s18
s_mul_i32 s20, s20, 28
s_add_u32 s20, s20, s19
s_lshl_b32 s20, s20, 10
s_cmp_eq_u32 s18, 3
s_cselect_b32 s21, 0x70000000, 0
v_bfe_u32 v2, v0, 4, 1
v_mul_lo_u32 v2, v2, s21
v_lshl_add_u32 v1, v0, 4, v2
s_waitcnt lgkmcnt(0)
s_mov_b32 s8, s6
s_mov_b32 s9, s7
s_mov_b32 s10, 0x10000000
s_mov_b32 s11, 0x20000
s_mov_b32 s12, s4
s_mov_b32 s13, s5
s_mov_b32 s14, 1605632
s_mov_b32 s15, 0x20000""")
    for h in range(16):
        e(f"buffer_load_dwordx4 {vr(16+4*h,4)}, v1, s[8:11], s20 offen {cfg.rd_flags}")
        if h < 15: e(f"s_add_u32 s20, s20, {4*28*1024}")
    e("""s_mul_i32 s22, s17, 112
s_lshl_b32 s23, s18, 5
s_add_u32 s22, s22, s23
s_mul_i32 s22, s22, 896
s_lshl_b32 s23, s19, 5
s_add_u32 s22, s22, s23
v_and_b32 v3, 31, v0
v_mul_u32_u24 v3, 896, v3
v_lshrrev_b32 v4, 5, v0
v_lshl_add_u32 v3, v4, 4, v3
v_add_u32 v3, v3, v2""")
    for h in range(16):
        e(f"s_waitcnt vmcnt({15-h})")
        for k in range(4):
            r = 16 + 4*h + k
            if h == 0:
                e(f"v_lshlrev_b32 v{8+2*k}, 16, v{r}\nv_and_b32 v{9+2*k}, 0xffff0000, v{r}")
            else:
                e(f"v_lshlrev_b32 v5, 16, v{r}\nv_and_b32 v6, 0xffff0000, v{r}\nv_add_f32 v{8+2*k}, v{8+2*k}, v5\nv_add_f32 v{9+2*k}, v{9+2*k}, v6")
    for k in range(4): e(f"v_cvt_pk_bf16_f32 v{16+k}, v{8+2*k}, v{9+2*k}")
    e("buffer_store_dwordx4 v[16:19], v3, s[12:15], s22 offen")
    if cfg.stamps:
        e("s_memrealtime s[32:33]\ns_waitcnt vmcnt(0)\ns_memrealtime s[34:35]\ns_waitcnt lgkmcnt(0)")
        e("v_mov_b32 v0, s30\nv_mov_b32 v1, s32\nv_mov_b32 v2, s34\nv_mov_b32 v3, 0\nv_mov_b32 v8, 0")
        e("s_lshl_b32 s24, s2, 3\ns_add_u32 s24, s24, s16\ns_lshl_b32 s24, s24, 4\ns_add_u32 s24, s24, 0x8100000\ns_mov_b64 exec, 1")
        e("buffer_store_dwordx4 v[0:3], v8, s[8:11], s24 offen")
    e("LB_end:\ns_endpgm\nLB_endoftext:")
    def kd(name, vg):
        return f""".amdhsa_kernel {name}
  .amdhsa_next_free_vgpr {vg}
  .amdhsa_next_free_sgpr 96
  .amdhsa_accum_offset {vg}
  .amdhsa_group_segment_fixed_size 0
  .amdhsa_kernarg_size 64
  .amdhsa_user_sgpr_count 2
  .amdhsa_user_sgpr_kernarg_segment_ptr 1
  .amdhsa_system_sgpr_workgroup_id_x 1
.end_amdhsa_kernel
"""
    return hdr + "\n" + "\n".join(e.L) + '\n.section .rodata,"a"\n.p2align 6\n' + kd(KA, 256) + ".p2align 6\n" + kd(KB, 80)

if __name__ == "__main__":
    cfg = Cfg()
    for a in sys.argv[2:]:
        k, v = a.split("=")
        cur = getattr(cfg, k)
        setattr(cfg, k, type(cur)(eval(v)) if not isinstance(cur, str) else v.replace("+", " "))
    open(sys.argv[1], "w").write(gen(cfg))
```

```python
import sys
def add(src, nt, dup, X, depth=8):
    s = open(src).read()
    lines = s.split("\n")
    idx = min(k for k, l in enumerate(lines) if l.startswith("; @launch"))
    lines.insert(idx, "; @launch kernel=stream_kernel grid=(256,1,1) block=(256,1,1) lds=131072")
    s = "\n".join(lines)
    n = 128 if dup else 64
    fl = "nt " if nt else ""
    code = f"""
.globl stream_kernel
.p2align 8
.type stream_kernel,@function
stream_kernel:
    s_cmp_ge_u32 s2, 256
    s_cbranch_scc1 LS_end
    s_load_dwordx4 s[4:7], s[0:1], 8
    v_lshrrev_b32 v1, 6, v0
    v_lshlrev_b32 v2, 4, v0
    v_readfirstlane_b32 s20, v1
    s_and_b32 s21, s2, 7
    s_lshr_b32 s22, s2, 3
    s_and_b32 s23, s22, 1
    s_lshr_b32 s22, s22, 1
    s_lshl_b32 s21, s21, 4
    s_add_u32 s21, s21, s22
    s_lshl_b32 s21, s21, 19
    s_mul_i32 s24, s23, {X if dup else 64}
    s_lshl_b32 s25, s20, 11
    s_waitcnt lgkmcnt(0)
    s_mov_b32 s8, s4
    s_mov_b32 s9, s5
    s_mov_b32 s10, 0x4000000
    s_mov_b32 s11, 0x20000
    s_mov_b32 s12, s6
    s_mov_b32 s13, s7
    s_mov_b32 s14, 0x4000000
    s_mov_b32 s15, 0x20000
    s_mov_b32 s26, 0
LS_loop:
    s_xor_b32 s27, s26, s24
    s_lshl_b32 s27, s27, 12
    s_add_u32 s27, s27, s21
    s_and_b32 s28, s26, {depth-1}
    s_lshl_b32 s28, s28, 13
    s_add_u32 m0, s28, s25
    s_nop 0
    buffer_load_dwordx4 v2, s[8:11], s27 offen {fl}lds
    s_add_u32 m0, m0, 1024
    s_nop 0
    buffer_load_dwordx4 v2, s[12:15], s27 offen {fl}lds
    s_waitcnt vmcnt({2*(depth-1)})
    s_add_u32 s26, s26, 1
    s_cmp_lt_u32 s26, {n}
    s_cbranch_scc1 LS_loop
    s_waitcnt vmcnt(0)
LS_end:
    s_endpgm
"""
    kd = """.p2align 6
.amdhsa_kernel stream_kernel
  .amdhsa_next_free_vgpr 8
  .amdhsa_next_free_sgpr 40
  .amdhsa_accum_offset 8
  .amdhsa_group_segment_fixed_size 0
  .amdhsa_kernarg_size 64
  .amdhsa_user_sgpr_count 2
  .amdhsa_user_sgpr_kernarg_segment_ptr 1
  .amdhsa_system_sgpr_workgroup_id_x 1
.end_amdhsa_kernel
"""
    a, b = s.split('.section .rodata,"a"')
    return a + code + '.section .rodata,"a"' + b + kd
if __name__ == "__main__":
    src = sys.argv[1]
    for spec in sys.argv[2:]:
        nt, dup, X = map(int, spec.split(","))
        open(src.replace(".s", f"_s{nt}{dup}{X}.s"), "w").write(add(src, nt, dup, X))
```

```python
import sys, math, struct

def f2u(x): return struct.unpack("<I", struct.pack("<f", x))[0]

class Cfg:
    nt_kv = True
    st_flags = "sc0 sc1"
    rd_flags = ""
    stamps = False
    wait_every = 2
    T = 16.0
    prio_c = 0
    prio_h = 0
    formal = True
    nokv = False
    ld_flags = 'sc0 sc1'
    out_flags = ''
    rotq = 7
    wait_early = False
    flag_gap = 24
    noreduce = False
    noflag = False
    nowait = False
    fstride = 256
    sleep = 2
    fl5 = True
    bmap = False
    nopoll = False
    poll_flags = 'sc0 sc1'
    poll_atomic = True
    flag_atomic = False
    nodata = False
    noout = False
    nt_w = False

PAIR = 34816; HALF = 17408; KST = 1040; VST = 1088
XBASE = 3 * PAIR; XT = 16640
LDS_BYTES = 163840
C_SCALE = math.log2(math.e) / 16.0

O0 = 0; Q0 = 128; SA = 192; SB = 208; F0 = 224
vAK = 248; vAV = 249; vNEG = 250; vTHR = 251; vL = 252; vMX = 253; vF = 254; vT = 255
sX, sK, sV, sWQ, sWO, sWS = 20, 24, 28, 32, 36, 40
sWAVE, sB, sH, sHALF, sROT = 44, 45, 46, 47, 48
sC = 49
sT0, sT1, sT2, sT3 = 50, 51, 52, 53
sCNT = 54; sDELTA = 55; sIDX = 56; sD2 = 57; sSTB = 58; sCH = 59
sLK, sLV, sLO = 60, 61, 62
sWOFF, sXOFF, sKVOFF, sOOFF = 63, 64, 65, 66
sROTO = 67
sOUT = 92
sNONCE = 96
FLAGBASE = 0x2000000
LDS_NONCE = 160000
vFOFF = 64; vNONCE = 65
sSTAMP = 70

def vr(a, n): return f"v[{a}:{a+n-1}]"
def sr(a, n=4): return f"s[{a}:{a+n-1}]"

class Em:
    def __init__(self):
        self.L = []
        self.q = []
    def __call__(self, s):
        for l in s.split("\n"):
            self.L.append("    " + l if not l.endswith(":") else l)
    def ds(self, s, tag):
        self(s); self.q.append(tag)
        assert len(self.q) <= 15, "lgkmcnt overflow"
    def wait(self, tags):
        idx = -1
        for i, t in enumerate(self.q):
            if t in tags: idx = i
        if idx < 0: return False
        n = len(self.q) - 1 - idx
        self(f"s_waitcnt lgkmcnt({n})")
        self.q = self.q[idx+1:]
        return True
    def waitall(self):
        self("s_waitcnt lgkmcnt(0)"); self.q = []

def bufseq(n):
    if n == 32: return [0,1,2,3,4]*4 + [0,1,2,3,4,5]*2
    if n == 16: return [0,1,2,3] + [0,1,2,3,4,5]*2
    raise

class MF:
    def __init__(self, d, b, c, loads, extra_tags=()):
        self.d, self.b, self.c, self.loads, self.extra = d, b, c, loads, tuple(extra_tags)

def kload(off):
    return [lambda f, off=off: f"ds_read_b128 {vr(f,4)}, v{vAK} offset:{off}"]
def trload(areg, off0, off1):
    return [lambda f, o=off0: f"ds_read_b64_tr_b16 {vr(f,2)}, v{areg} offset:{o}",
            lambda f, o=off1: f"ds_read_b64_tr_b16 {vr(f+2,2)}, v{areg} offset:{o}"]

def mf_qk(Y, base):
    return [MF(vr(Y,16), vr(Q0+4*s,4), "0" if s == 0 else vr(Y,16), kload(base + s*32)) for s in range(16)]
def mf_pv(X, base, first=False):
    r = []
    for t in range(2):
        for dt in range(8):
            o = base + t*512 + dt*64
            r.append(MF(vr(O0+16*dt,16), vr(X+4*t,4), "0" if (first and t == 0) else vr(O0+16*dt,16), trload(vAV, o, o + 8*VST)))
    return r
def mf_qproj():
    r = []
    for a in range(2):
        for t in range(2):
            for dt in range(8):
                o = a*HALF + t*512 + dt*64
                r.append(MF(vr(O0+16*dt,16), vr(SB+4*(a*2+t),4), vr(O0+16*dt,16), trload(vAV, o, o + 4*VST), extra_tags=[f"x{a*2+t}"]))
    return r
def mf_oproj(acc, base):
    r = []
    for ks in range(16):
        for nt in range(2):
            o = base + (16*ks) * 128
            r.append(MF(vr(acc+16*nt,16), vr(Q0+4*ks,4), "0" if ks == 0 else vr(acc+16*nt,16), trload(vAK if nt == 0 else vAV, o, o + 8*128)))
    return r

def emit_block(e, cfg, name, mfs, nxt, fill, nxtname, barrier=True, pre_issued=5, post_barrier=None):
    n = len(mfs)
    if n == 32:
        seq = [0,1,2,3,4]*4 + [0,1,2,3,4,5]*2
        ig = {m: (m-5 if m <= 24 else m-6) for m in range(n)}
    else:
        seq = [0,1,2,3,4] + [0,1,2,3,4] + [0,1,2,3,4,5]
        ig = {m: m-5 for m in range(n)}
        ig[15] = 9
    bar_gap = n - 5
    def issue(mf, buf, tag):
        for ld in mf.loads: e.ds(ld(F0 + 4*buf), tag)
    for m in range(n):
        mf = mfs[m]
        tags = {(name, m)} | set(mf.extra)
        if cfg.wait_every == 2:
            if m % 2 == 0 and m + 1 < n: tags |= {(name, m+1)} | set(mfs[m+1].extra)
        e.wait(tags)
        e(f"v_mfma_f32_32x32x16_bf16 {mf.d}, {vr(F0+4*seq[m],4)}, {mf.b}, {mf.c}")
        for mm in range(pre_issued, n):
            if ig[mm] == m: issue(mfs[mm], seq[mm], (name, mm))
        if nxt is not None and m > bar_gap:
            k = m - bar_gap
            lst = [0, 1] if k == 1 else [k]
            for mm in lst: issue(nxt[mm], mm, (nxtname, mm))
            if post_barrier and k in post_barrier:
                for it in post_barrier[k]: e.ds(*it)
        for it in fill.get(m, []):
            if isinstance(it, tuple): e.ds(*it)
            else: e(it)
        if m == bar_gap and barrier:
            if cfg.formal: e.waitall()
            if barrier is True: e("s_barrier")
            else:
                e(barrier[0]); e(f"s_cbranch_scc1 {barrier[1]}"); e("s_barrier"); e(f"{barrier[1]}:")

def rename(e, old, new):
    e.q = [((new, t[1]) if isinstance(t, tuple) and t[0] == old else t) for t in e.q]

def softmax_ops(X):
    ops = []
    for step in range(16 + 3):
        if step < 16: ops.append((1, f"v_fma_f32 v{X+step}, v{X+step}, s{sC}, v{vNEG}"))
        e1 = step - 1
        if 0 <= e1 < 16: ops.append((2, f"v_exp_f32 v{X+e1}, v{X+e1}"))
        e2 = step - 2
        if 0 <= e2 < 16:
            if step >= 17: ops.append((1, "s_nop 0"))
            ops.append((1, f"v_add_f32 v{vL}, v{vL}, v{X+e2}"))
        e3 = step - 3
        if 0 <= e3 < 16 and e3 % 2 == 1:
            k = e3 // 2
            ops.append((1, f"v_cvt_pk_bf16_f32 v{X+k}, v{X+2*k}, v{X+2*k+1}"))
    return ops

def max_ops(Y):
    ops = [f"v_max3_f32 v{vMX}, v{Y}, v{Y+1}, v{Y+2}"]
    for i in range(6): ops.append(f"v_max3_f32 v{vMX}, v{vMX}, v{Y+3+2*i}, v{Y+4+2*i}")
    ops.append(f"v_max_f32 v{vMX}, v{vMX}, v{Y+15}")
    return ops

def distribute(ops, gaps, budgets, fill):
    i = 0
    for g, b in zip(gaps, budgets):
        used = 0
        while i < len(ops) and used + ops[i][0] <= b:
            fill.setdefault(g, []).append(ops[i][1]); used += ops[i][0]; i += 1
    return ops[i:]

TAIL_GAPS = [22,23,24,25,26,27,28,29,30,31]
TAIL_BUD  = [3, 3, 3, 3, 5, 3, 3, 4, 4, 3]
HEAD_GAPS = list(range(0, 15))
HEAD_BUD  = [4,4,4,4,4,4,4,4,4,4,3,3,3,3,3]

def gen(cfg):
    e = Em()
    KA = "standalone__mha_block_cached__near_ridge_kernel"
    hdr = f"""; fused MHA block: Qproj + attention + out-proj partials + cross-workgroup head reduction
; @launch grid=(256,1,1) block=(512,1,1) lds={LDS_BYTES}
.amdgcn_target "amdgcn-amd-amdhsa--gfx950"
.text
.globl {KA}
.p2align 8
.type {KA},@function
{KA}:"""
    nst = [0]
    def stamp():
        if not cfg.stamps: return
        i = nst[0]; nst[0] += 1
        e(f"s_memrealtime s[{sSTAMP}:{sSTAMP+1}]\ns_memtime s[90:91]\ns_waitcnt lgkmcnt(0)\ns_mov_b32 s{72+i}, s{sSTAMP}\ns_mov_b32 s{80+i}, s90")
        e.q = []
    e("s_cmp_ge_u32 s2, 256\ns_cbranch_scc1 LA_end")
    e("s_load_dwordx16 s[4:19], s[0:1], 0")
    e("v_lshrrev_b32 v1, 6, v0\nv_and_b32 v0, 63, v0")
    e(f"v_readfirstlane_b32 s{sWAVE}, v1")
    e(f"""s_and_b32 s{sT0}, s2, 7
s_lshr_b32 s{sT1}, s2, 3
s_and_b32 s{sHALF}, s{sT1}, 1
s_lshr_b32 s{sT1}, s{sT1}, 1
s_lshr_b32 s{sT2}, s{sT1}, 2
s_and_b32 s{sT3}, s{sT1}, 3
s_lshr_b32 s{sB}, s{sT0}, 2
s_lshl_b32 s{sB}, s{sB}, 2
s_add_u32 s{sB}, s{sB}, s{sT2}
s_and_b32 s{sH}, s{sT0}, 3
s_lshl_b32 s{sH}, s{sH}, 2
s_add_u32 s{sH}, s{sH}, s{sT3}
s_add_u32 s{sROT}, s{sT2}, s{sT3}
s_lshl_b32 s{sROT}, s{sROT}, 1
s_add_u32 s{sROT}, s{sROT}, s{sHALF}
s_sub_u32 s{sT0}, s{sROT}, 7
s_cmp_ge_u32 s{sROT}, 7
s_cselect_b32 s{sROT}, s{sT0}, s{sROT}
s_lshl_b32 s{sROTO}, s{sT2}, 1
s_add_u32 s{sROTO}, s{sROTO}, s{sHALF}
s_cmp_eq_u32 s{sROTO}, 7
s_cselect_b32 s{sROTO}, 0, s{sROTO}""")
    if cfg.bmap:
        e(f"""s_and_b32 s{sB}, s2, 7
s_lshr_b32 s{sH}, s2, 4
s_add_u32 s{sROT}, s{sB}, s{sH}
s_mul_i32 s{sT0}, s{sROT}, 37
s_lshr_b32 s{sT0}, s{sT0}, 8
s_mul_i32 s{sT0}, s{sT0}, 7
s_sub_u32 s{sROT}, s{sROT}, s{sT0}
s_cmp_eq_u32 s{sB}, 7
s_cselect_b32 s{sROTO}, 0, s{sB}""")
    e("s_waitcnt lgkmcnt(0)")
    for srd, p, nb in ((sX,4,1605632),(sK,6,67108864),(sV,8,67108864),(sWQ,10,3670016),(sWO,12,3670016),(sWS,18,268435456),(sOUT,14,1605632)):
        e(f"s_mov_b32 s{srd}, s{p}\ns_mov_b32 s{srd+1}, s{p+1}\ns_mov_b32 s{srd+2}, {nb}\ns_mov_b32 s{srd+3}, 0x20000")
    e(f"s_cmp_ge_u32 s{sWAVE}, 4\ns_cbranch_scc1 LA_helper")

    if cfg.prio_c: e(f"s_setprio {cfg.prio_c}")
    stamp()
    lane = vT
    e(f"v_mov_b32 v{lane}, v0")
    e(f"s_mov_b32 s{sC}, {hex(f2u(C_SCALE))}")
    t = SA
    def lane_fields():
        e(f"""v_lshrrev_b32 v{t}, 5, v{lane}
v_bfe_u32 v{t+1}, v{lane}, 2, 2
v_bfe_u32 v{t+2}, v{lane}, 4, 1
v_and_b32 v{t+3}, 3, v{lane}
v_and_b32 v{t+4}, 1, v{lane}
v_lshlrev_b32 v{t+4}, 1, v{t+4}
v_bfe_u32 v{t+5}, v{lane}, 1, 1
v_or_b32 v{t+4}, v{t+4}, v{t+5}
v_and_b32 v{t+5}, 15, v{lane}""")
    lane_fields()
    e(f"""v_lshl_add_u32 v{t+6}, v{t}, 3, v{t+1}
v_mul_u32_u24 v{vAV}, {VST}, v{t+6}
v_lshl_add_u32 v{vAV}, v{t+2}, 5, v{vAV}
v_lshl_add_u32 v{vAV}, v{t+4}, 3, v{vAV}
v_add_u32 v{vAV}, {2*PAIR}, v{vAV}""")
    e(f"""v_mul_u32_u24 v{vMX}, {KST}, v{t+5}
v_lshl_add_u32 v{vMX}, v{t+2}, 9, v{vMX}
v_lshl_add_u32 v{vMX}, v{t}, 4, v{vMX}""")
    e(f"s_lshl_b32 s{sT0}, s{sWAVE}, 7\ns_add_u32 s{sT0}, s{sT0}, {XBASE + 2*XT}\nv_add_u32 v{vAK}, s{sT0}, v{vMX}")
    e(f"""v_lshl_add_u32 v{t+6}, v{t}, 2, v{t+1}
v_mul_u32_u24 v{vF}, {VST}, v{t+6}
v_lshl_add_u32 v{vF}, v{t+2}, 5, v{vF}
v_lshl_add_u32 v{vF}, v{t+3}, 3, v{vF}
v_add_u32 v{vF}, {HALF}, v{vF}""")
    e(f"s_lshl_b32 s{sNONCE}, s{sB}, 1\ns_add_u32 s{sNONCE}, s{sNONCE}, s{sHALF}")
    e(f"s_or_b32 s{sT0}, s{sWAVE}, s{sH}\ns_cmp_lg_u32 s{sT0}, 0\ns_cbranch_scc1 LA_nononce")
    e(f"s_mul_i32 s{sT0}, s{sNONCE}, {28*cfg.fstride}\ns_add_u32 s{sT0}, s{sT0}, {FLAGBASE}")
    e(f"v_mul_u32_u24 v{Q0}, {cfg.fstride}, v{lane}\nv_mov_b32 v{Q0+1}, 0\ns_mov_b64 exec, 0xfffffff")
    e(f"buffer_store_dword v{Q0+1}, v{Q0}, {sr(sWS)}, s{sT0} offen sc0 sc1\ns_mov_b64 exec, -1")
    e("LA_nononce:")
    for i in range(0, 128, 2): e(f"v_mov_b64 {vr(i,2)}, 0")
    e(f"s_mov_b32 s{sCNT}, 7\ns_mov_b32 s{sIDX}, 2")
    e("s_barrier")
    stamp()
    qp = mf_qproj()
    def xload(i): return (f"ds_read_b128 {vr(SB+4*i,4)}, v{vAK} offset:{i*32}", f"x{i}")
    for mm in (0, 1):
        for ld in qp[mm].loads: e.ds(ld(F0+4*mm), ("qp", mm))
    e.ds(*xload(0))
    for mm in (2, 3, 4):
        for ld in qp[mm].loads: e.ds(ld(F0+4*mm), ("qp", mm))
    q_entry = list(e.q)
    e(".p2align 3\nLA_qp:")
    fill = {
        1: [xload(1)], 8: [xload(2)], 16: [xload(3)],
        20: [f"s_add_u32 s{sIDX}, s{sIDX}, 1", f"s_cmp_eq_u32 s{sIDX}, 3"],
        21: [f"s_cselect_b32 s{sDELTA}, {(-2*PAIR) & 0xffffffff}, {PAIR}" if False else f"s_cselect_b32 s{sIDX}, 0, s{sIDX}",
             f"s_cselect_b32 s{sDELTA}, -2, 1"],
        22: [f"s_mul_i32 s{sD2}, s{sDELTA}, {XT}", f"s_mul_i32 s{sDELTA}, s{sDELTA}, {PAIR}"],
        26: [f"v_add_u32 v{vAV}, s{sDELTA}, v{vAV}", f"v_add_u32 v{vAK}, s{sD2}, v{vAK}", f"s_sub_u32 s{sCNT}, s{sCNT}, 1"],
        31: [f"s_cmp_lg_u32 s{sCNT}, 0"],
    }
    emit_block(e, cfg, "qp", qp, qp, fill, "qpn", post_barrier={1: [xload(0)]})
    rename(e, "qpn", "qp")
    assert e.q == q_entry, (e.q, q_entry)
    e("s_cbranch_scc1 LA_qp")
    stamp()
    rename(e, "qp", "junk")
    e(f"s_or_b32 s{sT0}, s{sWAVE}, s{sH}\ns_cmp_lg_u32 s{sT0}, 0\ns_cbranch_scc1 LA_nononce2")
    e(f"s_lshl_b32 s{sT0}, s{sNONCE}, 2\nv_mov_b32 v{vNEG}, s{sT0}\nv_mov_b32 v{vL}, 1\ns_mov_b64 exec, 1\ns_waitcnt vmcnt(0)")
    e(f"global_store_dword v{vNEG}, v{vL}, s[16:17] sc0 sc1\ns_mov_b64 exec, -1")
    e("LA_nononce2:")
    e(f"v_mov_b32 v{vAK}, v{vMX}\nv_mov_b32 v{vAV}, v{vF}")
    qk0 = mf_qk(SA, 0)
    e.waitall()
    for mm in range(5):
        for ld in qk0[mm].loads: e.ds(ld(F0+4*mm), ("qk0", mm))
    def qcvt(s):
        b = O0 + 16*(s >> 1) + 8*(s & 1)
        return [f"v_cvt_pk_bf16_f32 v{Q0+4*s+k}, v{b+2*k}, v{b+2*k+1}" for k in range(4)]
    for s in range(2):
        for x in qcvt(s): e(x)
    fill = {g: qcvt(g+2) for g in range(14)}
    st8 = mf_qk(SB, PAIR) + mf_pv(SA, PAIR, first=True)
    emit_block(e, cfg, "qk0", qk0, st8, fill, "m")
    def tail_fill(fill, Y, site):
        mo = max_ops(Y)
        fill.setdefault(18, []).extend(mo[0:3]); fill.setdefault(19, []).extend(mo[3:4]); fill.setdefault(20, []).extend(mo[4:7])
        fill.setdefault(21, []).extend(mo[7:8] + [f"v_cmp_gt_f32 vcc, v{vMX}, v{vTHR}"])
        fill.setdefault(22, []).extend([f"s_cbranch_vccnz LA_rareA{site}", f"LA_retA{site}:"])
        rem = distribute(softmax_ops(Y), TAIL_GAPS, TAIL_BUD, fill)
        fill.setdefault(31, []).extend([f"s_cbranch_vccnz LA_rareB{site}", f"LA_retB{site}:"])
        return len(rem)
    ntail_rem = None
    fill = {}
    init = [(1, x) for x in max_ops(SA)] + [(1, f"v_mov_b32 v{vT}, v{vMX}"), (1, f"v_mov_b32 v{vL}, 0"), (1, "s_nop 0"),
            (1, f"v_permlane32_swap_b32 v{vT}, v{vMX}"), (1, f"v_max_f32 v{vMX}, v{vMX}, v{vT}"),
            (1, f"v_mul_f32 v{vNEG}, {hex(f2u(-C_SCALE))}, v{vMX}"), (1, f"v_add_f32 v{vTHR}, {hex(f2u(cfg.T / C_SCALE))}, v{vMX}")]
    fill[0] = ["s_nop 7"]
    rem = distribute(init + softmax_ops(SA), list(range(1, 15)), [7]*14, fill)
    assert not rem, rem
    fill.setdefault(15, []).append(f"v_add_u32 v{vAK}, {2*PAIR}, v{vAK}")
    fill[15].append(f"s_mov_b32 s{sCNT}, 15"); fill[15].append(f"s_mov_b32 s{sDELTA}, {(-2*PAIR) & 0xffffffff}")
    ntail_rem = tail_fill(fill, SB, 0)
    fill.setdefault(27, []).append(f"v_add_u32 v{vAV}, {2*PAIR}, v{vAV}")
    lA = mf_qk(SA, 0) + mf_pv(SB, 0)
    lB = mf_qk(SB, PAIR) + mf_pv(SA, PAIR)
    emit_block(e, cfg, "m", st8, lA, fill, "mA")
    q_entry = list(e.q)
    stamp_q = list(e.q)
    e(".p2align 3\nLA_main:")
    def head_fill(X):
        fill = {}
        ops = softmax_ops(X)
        ops = ops[len(ops)-ntail_rem:]
        rem = distribute(ops, HEAD_GAPS, HEAD_BUD, fill)
        assert not rem, rem
        return fill
    fill = head_fill(SB); tail_fill(fill, SA, 1)
    emit_block(e, cfg, "mA", lA, lB, fill, "mB")
    fill = head_fill(SA)
    fill.setdefault(15, []).append(f"v_add_u32 v{vAK}, s{sDELTA}, v{vAK}")
    fill.setdefault(16, []).append(f"s_sub_u32 s{sCNT}, s{sCNT}, 1")
    tail_fill(fill, SB, 2)
    fill.setdefault(27, []).insert(0, f"v_add_u32 v{vAV}, s{sDELTA}, v{vAV}")
    fill.setdefault(28, []).append(f"s_sub_u32 s{sDELTA}, 0, s{sDELTA}")
    fill.setdefault(31, []).append(f"s_cmp_lg_u32 s{sCNT}, 0")
    emit_block(e, cfg, "mB", lB, lA, fill, "mA")
    assert e.q == q_entry, (e.q, q_entry)
    e("s_cbranch_scc1 LA_main")
    stamp()
    rename(e, "mA", "junk")
    pvl = mf_pv(SB, 0)
    e.waitall()
    for mm in range(5):
        for ld in pvl[mm].loads: e.ds(ld(F0+4*mm), ("pvl", mm))
    ops = softmax_ops(SB); ops = ops[len(ops)-ntail_rem:]
    for c_, x in ops: e(x)
    e("s_nop 1")
    t = SA
    fill = {}
    fill[0] = [f"v_mov_b32 v{vT}, v{vL}", f"v_mbcnt_lo_u32_b32 v{vMX}, -1, 0", f"v_mbcnt_hi_u32_b32 v{vMX}, -1, v{vMX}"]
    fill[1] = [f"v_permlane32_swap_b32 v{vT}, v{vL}", f"v_add_f32 v{vL}, v{vL}, v{vT}", f"v_rcp_f32 v{vF}, v{vL}"]
    ln = vMX
    fill[2] = f"""v_lshrrev_b32 v{t}, 5, v{ln}
v_bfe_u32 v{t+1}, v{ln}, 2, 2
v_bfe_u32 v{t+2}, v{ln}, 4, 1""".split("\n")
    fill[3] = f"""v_and_b32 v{t+4}, 1, v{ln}
v_lshlrev_b32 v{t+4}, 1, v{t+4}
v_bfe_u32 v{t+5}, v{ln}, 1, 1""".split("\n")
    fill[4] = f"""v_or_b32 v{t+4}, v{t+4}, v{t+5}
v_lshl_add_u32 v{t+6}, v{t}, 2, v{t+1}
v_lshlrev_b32 v{t+6}, 7, v{t+6}""".split("\n")
    fill[5] = f"""v_lshl_add_u32 v{t+6}, v{t+2}, 5, v{t+6}
v_lshl_add_u32 v{t+6}, v{t+4}, 3, v{t+6}
v_bfe_u32 v{t+7}, v{ln}, 3, 1""".split("\n")
    fill[6] = f"""v_lshl_add_u32 v{vAK}, v{t+7}, 6, v{t+6}
v_add_u32 v{vAK}, {PAIR-32768}, v{vAK}
v_xor_b32 v{t+6}, 64, v{vAK}""".split("\n")
    fill[7] = f"""v_lshlrev_b32 v{vTHR}, 4, v{ln}
s_cmp_eq_u32 s{sWAVE}, 3
s_cselect_b32 s{sT0}, 0x70000000, 0""".split("\n")
    fill[8] = f"""v_mul_lo_u32 v{t+7}, v{t+2}, s{sT0}
v_add_u32 v{vTHR}, v{vTHR}, v{t+7}""".split("\n")
    fill[10] = [f"v_mov_b32 v{vAV}, v{t+6}",
                f"s_lshl_b32 s{sT0}, s{sB}, 1", f"s_add_u32 s{sT0}, s{sT0}, s{sHALF}", f"s_lshl_b32 s{sT0}, s{sT0}, 4", f"s_add_u32 s{sT0}, s{sT0}, s{sH}"]
    fill[12] = [f"s_lshl_b32 s{sT0}, s{sT0}, 2", f"s_add_u32 s{sT0}, s{sT0}, s{sWAVE}", f"s_mul_i32 s{sSTB}, s{sT0}, {28*1024}", f"s_mov_b32 s{sCH}, s{sROTO}"]
    op0 = mf_oproj(0, 32768)
    emit_block(e, cfg, "pvl", pvl, op0, fill, "o0")
    e("s_nop 7")
    for dt in range(8):
        for k in range(0, 16, 2):
            e(f"v_pk_mul_f32 {vr(O0+16*dt+k,2)}, {vr(O0+16*dt+k,2)}, {vr(vF,2)} op_sel_hi:[1,0]")
        for k in range(8):
            e(f"v_cvt_pk_bf16_f32 v{Q0+8*dt+k}, v{O0+16*dt+2*k}, v{O0+16*dt+2*k+1}")
    e("s_nop 1")
    stamp()
    opA = mf_oproj(32, 0); opB = mf_oproj(0, 32768)
    sFL = sD2
    sCHF = sIDX
    fill = {26: [f"v_add_u32 v{vAV}, {2*PAIR}, v{vAV}", f"v_add_u32 v{vAK}, {2*PAIR}, v{vAK}"],
            10: [f"s_mov_b32 s{sCNT}, 3", f"s_mov_b32 s{sDELTA}, {(-2*PAIR) & 0xffffffff}"],
            0: [f"s_lshl_b32 s{sT0}, s{sNONCE}, 2"],
            1: [f"v_mov_b32 v{vNONCE+1}, s{sT0}"],
            2: [f"global_load_dword v{vNONCE}, v{vNONCE+1}, s[16:17]"],
            30: ["s_waitcnt vmcnt(0)", f"v_cmp_eq_u32 vcc, 0, v{vNONCE}"],
            31: ["s_cbranch_vccnz LA_nretry", "LA_nret:"],
            4: [f"v_mbcnt_lo_u32_b32 v{vFOFF}, -1, 0", f"v_mbcnt_hi_u32_b32 v{vFOFF}, -1, v{vFOFF}"],
            5: [f"v_min_u32 v{vFOFF}, 1, v{vFOFF}", f"v_mul_u32_u24 v{vFOFF}, 0x700000, v{vFOFF}"],
            6: [f"v_lshlrev_b32 v{vFOFF}, 8, v{vFOFF}"],
            12: [f"s_lshl_b32 s{sFL}, s{sB}, 1", f"s_add_u32 s{sFL}, s{sFL}, s{sHALF}", f"s_mul_i32 s{sFL}, s{sFL}, 28"],
            13: [f"s_add_u32 s{sFL}, s{sFL}, s{sWAVE}", f"s_mul_i32 s{sFL}, s{sFL}, {cfg.fstride//4}"],
            14: [f"s_lshl_b32 s{sFL}, s{sFL}, 2", f"s_add_u32 s{sFL}, s{sFL}, {FLAGBASE}", f"s_mov_b32 s{sCHF}, s{sROTO}"],
            }
    emit_block(e, cfg, "o0", op0, opA, fill, "oA")
    q_entry = list(e.q)
    def flag_items(cnt=0):
        return [[f"s_mul_i32 s{sT1}, s{sCHF}, {4*cfg.fstride}", f"s_add_u32 s{sT1}, s{sT1}, s{sFL}", f"s_add_u32 s{sCHF}, s{sCHF}, 1"],
                [f"s_cmp_eq_u32 s{sCHF}, 7", f"s_cselect_b32 s{sCHF}, 0, s{sCHF}"],
                ([] if cfg.nowait else [f"s_waitcnt vmcnt({cnt})"]) + ([] if cfg.noflag else [f"buffer_atomic_add v{vNONCE}, v{vFOFF}, {sr(sWS)}, s{sT1} offen sc1"])]
    def store_items(acc, S):
        items = []
        items.append([f"s_lshl_b32 s{sT0}, s{sCH}, 12", f"s_add_u32 s{sT0}, s{sT0}, s{sSTB}",
                      f"s_add_u32 s{sCH}, s{sCH}, 1"])
        items.append([f"s_cmp_eq_u32 s{sCH}, 7", f"s_cselect_b32 s{sCH}, 0, s{sCH}"])
        for p in range(4):
            b = acc + 8*p
            cv = [f"v_cvt_pk_bf16_f32 v{S+4*p+k}, v{b+2*k}, v{b+2*k+1}" for k in range(4)]
            items.append(cv[:2]); items.append(cv[2:])
            items.append([f"buffer_store_dwordx4 {vr(S+4*p,4)}, v{vTHR}, {sr(sWS)}, s{sT0} offen offset:{p*1024} {cfg.st_flags}"])
        return items
    def op_fill(acc, S, skip=None):
        f = {2+i: it for i, it in enumerate(store_items(acc, S))}
        fi = flag_items(5 if cfg.fl5 else 4)
        if skip is not None and cfg.fl5:
            f[cfg.flag_gap-2] = [f"s_mul_i32 s{sT1}, s{sCHF}, {4*cfg.fstride}", f"s_add_u32 s{sT1}, s{sT1}, s{sFL}", f"s_add_u32 s{sT2}, s{sCHF}, 1"]
            f[cfg.flag_gap-1] = [f"s_cmp_eq_u32 s{sT2}, 7", f"s_cselect_b32 s{sT2}, 0, s{sT2}", skip[0], f"s_cselect_b32 s{sT1}, 0x7ff00000, s{sT1}", f"s_cselect_b32 s{sCHF}, s{sCHF}, s{sT2}"]
            f[cfg.flag_gap] = fi[2]
        elif skip is None:
            f[cfg.flag_gap-2] = fi[0]; f[cfg.flag_gap-1] = fi[1]; f[cfg.flag_gap] = fi[2]
        else:
            f[cfg.flag_gap] = [skip[0], f"s_cbranch_scc1 {skip[1]}"] + fi[0] + fi[1] + fi[2] + [skip[1] + ":"]
        return f
    e(".p2align 3\nLA_op:")
    fill = op_fill(0, SA, skip=(f"s_cmp_eq_u32 s{sCNT}, 3", "LA_nf1"))
    emit_block(e, cfg, "oA", opA, opB, fill, "oB", barrier=(f"s_cmp_lt_u32 s{sCNT}, 2", "LA_nb1"))
    fill = op_fill(32, SB)
    fill[26] = [f"v_add_u32 v{vAV}, s{sDELTA}, v{vAV}", f"v_add_u32 v{vAK}, s{sDELTA}, v{vAK}", f"s_sub_u32 s{sDELTA}, 0, s{sDELTA}"]
    fill[30] = [f"s_sub_u32 s{sCNT}, s{sCNT}, 1"]
    fill[31] = fill.get(31, []) + [f"s_cmp_lg_u32 s{sCNT}, 0"]
    emit_block(e, cfg, "oB", opB, opA, fill, "oA", barrier=(f"s_cmp_lt_u32 s{sCNT}, 3", "LA_nb2"))
    assert e.q == q_entry
    e("s_cbranch_scc1 LA_op")
    e("s_nop 7")
    for it in store_items(0, SA) + flag_items(5 if cfg.fl5 else 4) + flag_items(1):
        for x in it: e(x)
    if cfg.stamps:
        stamp()
        e("s_waitcnt vmcnt(0)")
        stamp()
        n = nst[0]
        for i in range(16): e(f"v_mov_b32 v{i}, s{72+i}" if (i % 8) < n else f"v_mov_b32 v{i}, 0")
        e(f"s_lshl_b32 s{sT0}, s2, 3\ns_add_u32 s{sT0}, s{sT0}, s{sWAVE}\ns_lshl_b32 s{sT0}, s{sT0}, 6\ns_add_u32 s{sT0}, s{sT0}, 0x8000000")
        e(f"v_mov_b32 v16, 0\ns_mov_b64 exec, 1")
        for i in range(4): e(f"buffer_store_dwordx4 v[{4*i}:{4*i+3}], v16, {sr(sWS)}, s{sT0} offen offset:{16*i}")
    e("s_endpgm")
    e("LA_nretry:")
    e(f"s_mov_b32 s{sT1}, 30000")
    e("LA_nretry1:")
    e(f"""global_load_dword v{vNONCE}, v{vNONCE+1}, s[16:17] sc0 sc1
s_sub_u32 s{sT1}, s{sT1}, 1
s_waitcnt vmcnt(0)
v_cmp_eq_u32 vcc, 0, v{vNONCE}
s_cbranch_vccz LA_nret
s_cmp_lg_u32 s{sT1}, 0
s_cbranch_scc1 LA_nretry1
s_branch LA_nret""")
    for site in range(3):
        e(f"LA_rareA{site}:")
        e(f"""v_mov_b32 v{vT}, v{vMX}
s_nop 1
v_permlane32_swap_b32 v{vT}, v{vMX}
v_max_f32 v{vMX}, v{vMX}, v{vT}
v_mul_f32 v{vT}, {hex(f2u(-C_SCALE))}, v{vMX}
v_min_f32 v{vT}, v{vT}, v{vNEG}
v_sub_f32 v{vF}, v{vT}, v{vNEG}
v_exp_f32 v{vF}, v{vF}
v_mov_b32 v{vNEG}, v{vT}
v_mul_f32 v{vL}, v{vL}, v{vF}
v_mul_f32 v{vT}, {hex(f2u(-1.0 / C_SCALE))}, v{vT}
v_add_f32 v{vTHR}, {hex(f2u(cfg.T / C_SCALE))}, v{vT}
s_branch LA_retA{site}""")
        e(f"LA_rareB{site}:")
        e("s_nop 15")
        for k in range(0, 128, 2):
            e(f"v_pk_mul_f32 {vr(O0+k,2)}, {vr(O0+k,2)}, {vr(vF,2)} op_sel_hi:[1,0]")
        e(f"s_nop 1\ns_branch LA_retB{site}")

    e(".p2align 6\nLA_helper:")
    if cfg.prio_h: e(f"s_setprio {cfg.prio_h}")
    vKV, vW, vXX, vO = 2, 3, 4, 5
    e(f"s_sub_u32 s{sWAVE}, s{sWAVE}, 4")
    e(f"""v_lshrrev_b32 v6, 5, v0
v_and_b32 v7, 31, v0
v_lshlrev_b32 v7, 4, v7
v_lshl_add_u32 v{vKV}, v6, 13, v7
v_lshl_add_u32 v{vW}, v6, 17, v7
v_bfe_u32 v8, v0, 3, 2
v_lshl_add_u32 v8, v8, 1, v6
v_mul_u32_u24 v{vXX}, {16*896}, v8
v_and_b32 v9, 7, v0
v_lshl_add_u32 v{vXX}, v9, 4, v{vXX}
v_cmp_eq_u32 vcc, 7, v8
v_mov_b32 v10, 0x70000000
s_nop 0
v_cndmask_b32 v{vXX}, v{vXX}, v10, vcc
v_lshrrev_b32 v8, 3, v0
v_mul_u32_u24 v{vO}, 896, v8
v_bfe_u32 v8, v0, 4, 1
v_lshlrev_b32 v8, 2, v8
v_xor_b32 v8, v8, v9
v_lshl_add_u32 v{vO}, v8, 4, v{vO}""")
    e(f"""s_mul_i32 s{sLK}, s{sWAVE}, {4*KST}
s_mul_i32 s{sLV}, s{sWAVE}, {4*VST}
s_lshl_b32 s{sLO}, s{sWAVE}, 13
s_lshl_b32 s{sWOFF}, s{sH}, 9
s_lshl_b32 s{sT0}, s{sWAVE}, 15
s_add_u32 s{sWOFF}, s{sWOFF}, s{sT0}
s_mul_i32 s{sXOFF}, s{sB}, 224
s_mul_i32 s{sT0}, s{sHALF}, 112
s_add_u32 s{sXOFF}, s{sXOFF}, s{sT0}
s_lshl_b32 s{sT0}, s{sWAVE}, 2
s_add_u32 s{sXOFF}, s{sXOFF}, s{sT0}
s_mul_i32 s{sXOFF}, s{sXOFF}, 896
s_lshl_b32 s{sKVOFF}, s{sB}, 4
s_add_u32 s{sKVOFF}, s{sKVOFF}, s{sH}
s_lshl_b32 s{sKVOFF}, s{sKVOFF}, 19
s_lshl_b32 s{sT0}, s{sWAVE}, 11
s_add_u32 s{sKVOFF}, s{sKVOFF}, s{sT0}
s_lshl_b32 s{sOOFF}, s{sH}, 8
s_lshl_b32 s{sT0}, s{sWAVE}, 6
s_add_u32 s{sOOFF}, s{sOOFF}, s{sT0}
s_mul_i32 s{sOOFF}, s{sOOFF}, 896
s_mov_b32 s{sCH}, s{sROT}""")
    def dma(srd, voff, sreg, simm, mreg, mimm, nt=False):
        e(f"s_add_u32 m0, s{mreg}, {mimm}\ns_add_u32 s{sT0}, s{sreg}, {simm}\nbuffer_load_dwordx4 v{voff}, {sr(srd)}, s{sT0} offen {'nt ' if nt else ''}lds")
    def adv_ch():
        e(f"s_add_u32 s{sCH}, s{sCH}, 1\ns_cmp_eq_u32 s{sCH}, 7\ns_cselect_b32 s{sCH}, 0, s{sCH}")
    kv_in_loop = [False]
    def issue(n, kvbase=0):
        if n <= 6:
            sl = (n + 2) % 3
            e(f"s_lshl_b32 s{sT1}, s{sCH}, 7\ns_add_u32 s{sT1}, s{sT1}, s{sXOFF}\ns_lshl_b32 s{sT2}, s{sCH}, 19\ns_add_u32 s{sT2}, s{sT2}, s{sWOFF}")
            for j in range(4): dma(sX, vXX, sT1, j*896, sLK, XBASE + sl*XT + j*KST)
            for a in range(2):
                for j in range(4): dma(sWQ, vW, sT2, (32*a + j)*8192, sLV, sl*PAIR + a*HALF + j*VST, cfg.nt_w)
            adv_ch()
            return 12
        sl = (n + 1) % 4
        if n <= 39:
            i = n - 8; c = 0
            if cfg.nokv and n > 10: return 0
            if i + 1 <= 31:
                for j in range(4): dma(sK, vKV, sKVOFF, (i+1-kvbase)*16384 + j*512, sLK, sl*PAIR + j*KST, cfg.nt_kv)
                c += 4
            if i >= 0:
                for j in range(4): dma(sV, vKV, sKVOFF, (i-kvbase)*16384 + j*512, sLV, sl*PAIR + HALF + j*VST, cfg.nt_kv)
                c += 4
            return c
        e(f"s_lshl_b32 s{sT1}, s{sCH}, 7\ns_add_u32 s{sT1}, s{sT1}, s{sOOFF}")
        for j in range(8): dma(sWO, vO, sT1, j*8*896, sLO, sl*PAIR + (0 if sl % 2 else PAIR-32768) + j*1024, cfg.nt_w)
        adv_ch()
        return 8
    out = []
    def do_issue(n, kvbase=0): out.append((n, issue(n, kvbase)))
    def wait_step(n):
        while out and out[0][0] <= n: out.pop(0)
        e(f"s_waitcnt vmcnt({sum(c for _, c in out)})")
    do_issue(0)
    e("s_getpc_b64 s[68:69]\nLA_pc:")
    e(f"s_sub_u32 s68, s68, LA_pc-{KA}\ns_subb_u32 s69, s69, 0")
    e(f"v_lshlrev_b32 v11, 7, v0\ns_lshl_b32 s{sT0}, s{sWAVE}, 13\nv_add_u32 v11, s{sT0}, v11\nv_min_u32 v11, LB_endoftext-{KA}-4, v11")
    e("global_load_dword v12, v11, s[68:69]")
    out.append((1, 1))
    do_issue(1); do_issue(2)
    sched = {1:[3],2:[4],3:[5],4:[6],5:[7],6:[8],7:[9,10]}
    for n in range(0, 8):
        wait_step(n); e("s_barrier")
        for s_ in sched.get(n, []): do_issue(s_)
    e(f"s_mov_b32 s{sCNT}, 7")
    e("LA_hloop:")
    entry = [c for _, c in out]
    for n in range(8, 12):
        wait_step(n); e("s_barrier"); do_issue(n+3)
    assert cfg.nokv or [c for _, c in out] == entry
    e(f"s_add_u32 s{sKVOFF}, s{sKVOFF}, {4*16384}\ns_sub_u32 s{sCNT}, s{sCNT}, 1\ns_cmp_lg_u32 s{sCNT}, 0\ns_cbranch_scc1 LA_hloop")
    out = [(s_ + 24, c) for s_, c in out]
    e(f"s_mov_b32 s{sCH}, s{sROTO}")
    for n in range(36, 45):
        wait_step(n if n < 44 else 46)
        e("s_barrier")
        if n + 3 <= 46: do_issue(n+3, kvbase=28)
    hw, hi_ = sT2, sT3
    e(f"s_cmp_ge_u32 s{sH}, {0 if cfg.noreduce else 14}\ns_cbranch_scc1 LA_end")
    e(f"s_lshl_b32 s{sT0}, s{sB}, 1\ns_add_u32 s{sT0}, s{sT0}, s{sHALF}\ns_lshl_b32 s{sT0}, s{sT0}, 2\nv_mov_b32 v6, s{sT0}\ns_mov_b32 s{sT1}, 30000")
    e(f"global_load_dword v7, v6, s[16:17]\ns_waitcnt vmcnt(0)\nv_cmp_eq_u32 vcc, 0, v7\ns_cbranch_vccz LA_hn2")
    e("LA_hn:")
    e(f"""global_load_dword v7, v6, s[16:17] sc0 sc1
s_sub_u32 s{sT1}, s{sT1}, 1
s_waitcnt vmcnt(0)
v_cmp_eq_u32 vcc, 0, v7
s_cbranch_vccz LA_hn2
s_cmp_lg_u32 s{sT1}, 0
s_cbranch_scc1 LA_hn""")
    e("LA_hn2:")
    e(f"s_lshr_b32 s{hw}, s{sH}, 2\ns_and_b32 s{hi_}, s{sH}, 3")
    sG, sPB, sFB, sOB, sJ, sTO = sWOFF, sXOFF, sKVOFF, sOOFF, sCNT, sDELTA
    e(f"""s_lshl_b32 s{sG}, s{sB}, 1
s_add_u32 s{sG}, s{sG}, s{sHALF}
s_lshl_b32 s{sPB}, s{sG}, 6
s_add_u32 s{sPB}, s{sPB}, s{hw}
s_mul_i32 s{sPB}, s{sPB}, {28*1024}
s_lshl_b32 s{sT0}, s{hi_}, 7
s_add_u32 s{sPB}, s{sPB}, s{sT0}
s_mul_i32 s{sFB}, s{sG}, 28
s_add_u32 s{sFB}, s{sFB}, s{hw}
s_mul_i32 s{sFB}, s{sFB}, {cfg.fstride}
s_add_u32 s{sFB}, s{sFB}, {FLAGBASE}
s_mul_i32 s{sOB}, s{sG}, 112
s_lshl_b32 s{sT0}, s{sH}, 3
s_add_u32 s{sOB}, s{sOB}, s{sT0}
s_mul_i32 s{sOB}, s{sOB}, 896
s_mov_b32 s{sJ}, s{sWAVE}
v_lshrrev_b32 v8, 3, v0
v_and_b32 v9, 7, v0
v_lshlrev_b32 v2, 9, v8
v_lshl_add_u32 v2, v9, 4, v2
v_mul_u32_u24 v3, 896, v9
v_lshl_add_u32 v3, v8, 4, v3
v_and_b32 v4, 15, v0
v_lshlrev_b32 v4, {2 if cfg.poll_atomic else 4}, v4
s_waitcnt lgkmcnt(0)""")
    e("LA_rloop:")
    e(f"""s_add_u32 s{sCH}, s{sROTO}, s{sJ}
s_sub_u32 s{sT0}, s{sCH}, 7
s_cmp_ge_u32 s{sCH}, 7
s_cselect_b32 s{sCH}, s{sT0}, s{sCH}
s_mul_i32 s{sT1}, s{sCH}, {4*cfg.fstride}
s_add_u32 s{sT1}, s{sT1}, s{sFB}
s_mov_b32 s{sTO}, 30000
s_mov_b64 exec, 1""")
    if cfg.stamps: e("s_memrealtime s[76:77]")
    if cfg.nopoll: e("s_branch LA_go")
    e("LA_poll:")
    if cfg.poll_atomic:
        e(f"""v_mov_b32 v84, 0
s_sub_u32 s{sTO}, s{sTO}, 1
buffer_atomic_add v84, v4, {sr(sWS)}, s{sT1} offen sc0 sc1
s_waitcnt vmcnt(0)
v_cmp_ne_u32 vcc, 16, v84""")
    else:
        e(f"""s_sub_u32 s{sTO}, s{sTO}, 1
buffer_load_dword v84, v4, {sr(sWS)}, s{sT1} offen {cfg.poll_flags}
s_waitcnt vmcnt(0)
v_cmp_ne_u32 vcc, 16, v84""")
    e(f"""s_cbranch_vccz LA_go
s_sleep {cfg.sleep}
s_cmp_lg_u32 s{sTO}, 0
s_cbranch_scc1 LA_poll""")
    e("LA_go:")
    e("s_mov_b64 exec, -1")
    if cfg.stamps: e("s_memrealtime s[78:79]")
    e(f"s_lshl_b32 s{sT0}, s{sCH}, 12\ns_add_u32 s{sT0}, s{sT0}, s{sPB}")
    for h in range(16):
        if not cfg.nodata: e(f"buffer_load_dwordx4 {vr(16+4*h,4)}, v2, {sr(sWS)}, s{sT0} offen {cfg.ld_flags}")
        if h < 15: e(f"s_add_u32 s{sT0}, s{sT0}, {4*28*1024}")
    for h in range(16):
        e(f"s_waitcnt vmcnt({15-h})")
        for k in range(4):
            r = 16 + 4*h + k
            if h == 0:
                e(f"v_lshlrev_b32 v{8+2*k}, 16, v{r}\nv_and_b32 v{9+2*k}, 0xffff0000, v{r}")
            else:
                e(f"v_lshlrev_b32 v5, 16, v{r}\nv_and_b32 v6, 0xffff0000, v{r}\nv_add_f32 v{8+2*k}, v{8+2*k}, v5\nv_add_f32 v{9+2*k}, v{9+2*k}, v6")
    if cfg.stamps: e("s_memrealtime s[80:81]")
    for k in range(4): e(f"v_cvt_pk_bf16_f32 v{80+k}, v{8+2*k}, v{9+2*k}")
    e(f"s_lshl_b32 s{sT0}, s{sCH}, 7\ns_add_u32 s{sT0}, s{sT0}, s{sOB}")
    if not cfg.noout: e(f"buffer_store_dwordx4 v[80:83], v3, {sr(sOUT)}, s{sT0} offen {cfg.out_flags}")
    e(f"s_add_u32 s{sJ}, s{sJ}, 4\ns_cmp_lt_u32 s{sJ}, 7\ns_cbranch_scc1 LA_rloop")
    if cfg.stamps:
        e(f"s_memrealtime s[72:73]\ns_waitcnt vmcnt(0)\ns_memrealtime s[74:75]\ns_waitcnt lgkmcnt(0)")
        e(f"v_mov_b32 v0, s76\nv_mov_b32 v1, s78\nv_mov_b32 v2, s{sTO}\nv_mov_b32 v3, s80\nv_mov_b32 v8, 0")
        e(f"s_lshl_b32 s{sT0}, s2, 2\ns_add_u32 s{sT0}, s{sT0}, s{sWAVE}\ns_lshl_b32 s{sT0}, s{sT0}, 4\ns_add_u32 s{sT0}, s{sT0}, 0x8100000\ns_mov_b64 exec, 1")
        e(f"buffer_store_dwordx4 v[0:3], v8, {sr(sWS)}, s{sT0} offen")
    e("LA_end:\ns_endpgm\nLB_endoftext:")
    def kd(name, vg):
        return f""".amdhsa_kernel {name}
  .amdhsa_next_free_vgpr {vg}
  .amdhsa_next_free_sgpr 100
  .amdhsa_accum_offset {vg}
  .amdhsa_group_segment_fixed_size 0
  .amdhsa_kernarg_size 64
  .amdhsa_user_sgpr_count 2
  .amdhsa_user_sgpr_kernarg_segment_ptr 1
  .amdhsa_system_sgpr_workgroup_id_x 1
.end_amdhsa_kernel
"""
    return hdr + "\n" + "\n".join(e.L) + '\n.section .rodata,"a"\n.p2align 6\n' + kd(KA, 256)

if __name__ == "__main__":
    cfg = Cfg()
    for a in sys.argv[2:]:
        k, v = a.split("=")
        cur = getattr(cfg, k)
        setattr(cfg, k, type(cur)(eval(v)) if not isinstance(cur, str) else v.replace("+", " "))
    open(sys.argv[1], "w").write(gen(cfg))
```

```python
import sys, math, struct

def f2u(x): return struct.unpack("<I", struct.pack("<f", x))[0]

class Cfg:
    nt_kv = True
    st_flags = "sc0 sc1"
    ld_flags = "sc0 sc1"
    out_flags = ""
    stamps = False
    prio_c = 3
    prio_h = 0
    formal = True
    fstride = 4352
    sleep = 8
    flag_unit = 30
    rotq = 2
    w3 = True
    nokv = False
    nowait = False
    noreduce = False
    ocv = 1
    rb = 16
    nostore = False
    early_rd = True

ST = 1056; HALF = 16896; PAIR = 33792
XBASE = 3 * PAIR; XT = HALF
OBIAS = PAIR - 32768
LDS_BYTES = 163840
C_SCALE = math.log2(math.e) / 16.0
FLAGBASE = 0x2000000

O0 = 0; Q0 = 128; SA = 192; SB = 208; F0 = 224
vAK = 248; vAV = 249; vL = 250
vT0 = 252; vT1 = 253; vT2 = 254; vT3 = 255
ACC0 = 192; ACC1 = 0; STG0 = 32; STG1 = 48
vAO = 64
vSO = 68; vFOFF = 69; vONE = 70; vRD = 71
sX, sK, sV, sWQ, sWO, sWS, sOUT = 20, 24, 28, 32, 36, 40, 92
sWAVE, sB, sH, sHALF, sTBL = 44, 45, 46, 47, 48
sC = 49
sT0, sT1, sT2, sT3 = 50, 51, 52, 53
sCNT = 54; sDELTA = 55; sIDX = 56; sD2 = 57; sSTB = 58; sCH = 59
sLK, sLV, sLO = 60, 61, 62
sWOFF, sXOFF, sKVOFF, sOOFF = 63, 64, 65, 66
sROTO = 67; sG = 96
sSTAMP = 70

def vr(a, n): return f"v[{a}:{a+n-1}]"
def sr(a, n=4): return f"s[{a}:{a+n-1}]"

class Em:
    def __init__(self):
        self.L = []; self.q = []
    def __call__(self, s):
        for l in s.split("\n"):
            self.L.append("    " + l if not l.endswith(":") else l)
    def ds(self, s, tag):
        self(s); self.q.append(tag)
        assert len(self.q) <= 15, "lgkmcnt overflow"
    def wait(self, tags):
        idx = -1
        for i, t in enumerate(self.q):
            if t in tags: idx = i
        if idx < 0: return False
        self(f"s_waitcnt lgkmcnt({len(self.q) - 1 - idx})")
        self.q = self.q[idx+1:]
        return True
    def waitall(self):
        self("s_waitcnt lgkmcnt(0)"); self.q = []

class U:
    def __init__(self, mf, loads, extra=()):
        self.mf, self.loads, self.extra = mf, loads, tuple(extra)

def kload(off): return [lambda f, o=off: f"ds_read_b128 {vr(f,4)}, v{vAK} offset:{o}"]
def trload(a, o0, o1):
    return [lambda f, o=o0: f"ds_read_b64_tr_b16 {vr(f,2)}, v{a} offset:{o}",
            lambda f, o=o1: f"ds_read_b64_tr_b16 {vr(f+2,2)}, v{a} offset:{o}"]
def oreg(qt, dt): return O0 + 64*qt + 4*dt
def qreg(qt, ks): return Q0 + 32*qt + 4*ks

def u_qk(Y, base, nq):
    return [U([(vr(Y+8*qt+4*kt,4), vr(qreg(qt,ks),4), "0" if ks == 0 else vr(Y+8*qt+4*kt,4)) for qt in range(nq)],
              kload(base + kt*512 + ks*64)) for kt in range(2) for ks in range(8)]
def u_pv(X, base, nq, first=False):
    return [U([(vr(oreg(qt,dt),4), vr(X+8*qt,4), "0" if first else vr(oreg(qt,dt),4)) for qt in range(nq)],
              trload(vAV, base + HALF + dt*32, base + HALF + 512 + dt*32)) for dt in range(16)]
def u_qp(nq, dtmajor=False):
    order = [(a, dt) for dt in range(16) for a in range(2)] if dtmajor else [(a, dt) for a in range(2) for dt in range(16)]
    return [U([(vr(oreg(qt,dt),4), vr(SB+4*(2*a+qt),4), vr(oreg(qt,dt),4)) for qt in range(nq)],
              trload(vAV, a*HALF + dt*32, a*HALF + 512 + dt*32), extra=[f"x{2*a+qt}" for qt in range(nq)]) for a, dt in order]
def u_op(acc, base, nq):
    return [U([(vr(acc+16*qt+4*nt,4), vr(qreg(qt,ks),4), "0" if ks == 0 else vr(acc+16*qt+4*nt,4)) for qt in range(nq)],
              trload(vAO+nt, base + ks*4096, base + ks*4096 + 2048)) for ks in range(8) for nt in range(4)]

def emit_block(e, cfg, name, us, nxt, fill, nxtname, barrier=True, split=False, post=None):
    n = len(us)
    if n == 32:
        seq = [0,1,2,3,4]*4 + [0,1,2,3,4,5]*2
        ig = {m: (m-5 if m <= 24 else m-6) for m in range(n)}
    else:
        seq = [0,1,2,3,4]*2 + [0,1,2,3,4,5]
        ig = {m: m-5 for m in range(n)}; ig[15] = 9
    bar = n - 5
    pend = []
    def put(it):
        if isinstance(it, tuple): e.ds(*it)
        else: e(it)
    e.wait({(name, 0)} | set(us[0].extra))
    for m in range(n):
        u = us[m]
        A = vr(F0+4*seq[m], 4)
        d, b, c = u.mf[0]
        e(f"v_mfma_f32_16x16x32_bf16 {d}, {A}, {b}, {c}")
        if len(u.mf) == 2:
            for it in pend: put(it)
            pend = []
            for it in fill.get(2*m, []): put(it)
            d, b, c = u.mf[1]
            e(f"v_mfma_f32_16x16x32_bf16 {d}, {A}, {b}, {c}")
        if m + 1 < n: e.wait({(name, m+1)} | set(us[m+1].extra))
        elif nxt is not None: e.wait({(nxtname, 0)} | set(nxt[0].extra))
        lds = []
        for mm in range(5, n):
            if ig[mm] == m: lds += [(ld(F0+4*seq[mm]), (name, mm)) for ld in us[mm].loads]
        if nxt is not None and m > bar:
            k = m - bar
            for mm in ([0, 1] if k == 1 else [k]): lds += [(ld(F0+4*mm), (nxtname, mm)) for ld in nxt[mm].loads]
            if post and k in post: lds += post[k]
        if len(u.mf) == 2 and m + 1 < n and ((split and len(lds) > 1) or len(lds) > 2):
            h = (len(lds) + 1) // 2
            pend = lds[h:]; lds = lds[:h]
        for it in lds: put(it)
        if len(u.mf) == 1:
            for it in fill.get(2*m, []): put(it)
        for it in fill.get(2*m+1, []): put(it)
        if m == bar and barrier:
            assert not pend
            if cfg.formal: e.waitall()
            if barrier is True: e("s_barrier")
            else:
                e(barrier[0]); e(f"s_cbranch_scc1 {barrier[1]}"); e("s_barrier"); e(f"{barrier[1]}:")

def rename(e, old, new):
    e.q = [((new, t[1]) if isinstance(t, tuple) and t[0] == old else t) for t in e.q]

def elems(nq):
    o = [(0,0),(0,1),(0,2),(0,3),(1,0),(1,1),(1,2),(1,3),(0,4),(0,5),(0,6),(0,7),(1,4),(1,5),(1,6),(1,7)]
    return [x if x[0] < nq else None for x in o]
def sm_exp(S, el): return [] if el is None else [f"v_exp_f32 v{S+8*el[0]+el[1]}, v{S+8*el[0]+el[1]}"]
def sm_post(S, el):
    if el is None: return []
    r = S + 8*el[0]
    o = [f"v_add_f32 v{vL+el[0]}, v{vL+el[0]}, v{r+el[1]}"]
    if el[1] % 2: o.append(f"v_cvt_pk_bf16_f32 v{r+el[1]//2}, v{r+el[1]-1}, v{r+el[1]}")
    return o
SM0 = 14
def sm_tail(fill, Y, nq):
    el = elems(nq)
    for u in range(SM0, 32):
        k = u - SM0
        fill.setdefault(2*u, []).extend(sm_exp(Y, el[k//2]) if k % 2 == 0 else sm_post(Y, el[k//2]))
def sm_head_list(X, nq):
    el = elems(nq); r = []
    for u in range(32, SM0 + 32):
        k = u - SM0
        r.append(sm_exp(X, el[k//2]) if k % 2 == 0 else sm_post(X, el[k//2]))
    return r
def sm_head(fill, X, nq):
    for u, ops in enumerate(sm_head_list(X, nq)): fill.setdefault(2*u, []).extend(ops)

def spread(fill, ops, gaps, per):
    i = 0
    for g in gaps:
        for _ in range(per):
            if i < len(ops): fill.setdefault(g, []).append(ops[i]); i += 1
    return ops[i:]

def gen(cfg):
    e = Em()
    KA = "standalone__mha_block_cached__near_ridge_kernel"
    hdr = f"""; fused MHA block: Q projection + attention + output projection + cross-workgroup head reduction
; @launch grid=(256,1,1) block=(512,1,1) lds={LDS_BYTES}
.amdgcn_target "amdgcn-amd-amdhsa--gfx950"
.text
.globl {KA}
.p2align 8
.type {KA},@function
{KA}:"""
    nst = [0]
    def stamp():
        if not cfg.stamps: return
        i = nst[0]; nst[0] += 1
        e(f"s_memrealtime s[{sSTAMP}:{sSTAMP+1}]\ns_memtime s[90:91]\ns_waitcnt lgkmcnt(0)\ns_mov_b32 s{72+i}, s{sSTAMP}\ns_mov_b32 s{80+i}, s90")
        e.q = []
    if cfg.stamps: e("s_memrealtime s[98:99]")
    e("s_cmp_ge_u32 s2, 256\ns_cbranch_scc1 LA_end")
    e("s_load_dwordx16 s[4:19], s[0:1], 0")
    e(f"v_lshrrev_b32 v1, 6, v0\nv_and_b32 v0, 63, v0\nv_readfirstlane_b32 s{sWAVE}, v1")
    e(f"""s_and_b32 s{sT0}, s2, 7
s_lshr_b32 s{sT1}, s2, 3
s_and_b32 s{sHALF}, s{sT1}, 1
s_lshr_b32 s{sT1}, s{sT1}, 1
s_lshr_b32 s{sT2}, s{sT1}, 2
s_and_b32 s{sT3}, s{sT1}, 3
s_lshr_b32 s{sB}, s{sT0}, 2
s_lshl_b32 s{sB}, s{sB}, 2
s_add_u32 s{sB}, s{sB}, s{sT2}
s_and_b32 s{sH}, s{sT0}, 3
s_lshl_b32 s{sH}, s{sH}, 2
s_add_u32 s{sH}, s{sH}, s{sT3}
s_lshl_b32 s{sROTO}, s{sT2}, 1
s_add_u32 s{sROTO}, s{sROTO}, s{sHALF}
s_lshl_b32 s{sG}, s{sB}, 1
s_add_u32 s{sG}, s{sG}, s{sHALF}""")
    R = cfg.rotq
    if R == 7:
        tb = [[(r + n) % 7 for n in range(7)] for r in range(7)]
        e(f"s_lshl_b32 s{sT0}, s{sT3}, 1\ns_add_u32 s{sT0}, s{sT0}, s{sROTO}\ns_sub_u32 s{sT1}, s{sT0}, 7\ns_cmp_ge_u32 s{sT0}, 7\ns_cselect_b32 s{sT0}, s{sT1}, s{sT0}")
    else:
        tb = []
        for r in range(R):
            o = []; base = 0
            while base < 7:
                w = min(R, 7 - base)
                o += [base + (r + n) % w for n in range(w)]; base += w
            tb.append(o)
        assert R in (1, 2, 4)
        e(f"s_add_u32 s{sT0}, s{sT3}, s{sROTO}\ns_and_b32 s{sT0}, s{sT0}, {R-1}")
    pk = [sum(c << (4*n) for n, c in enumerate(o)) for o in tb]
    e(f"s_mov_b32 s{sTBL}, {hex(pk[0])}")
    for r in range(1, len(pk)): e(f"s_cmp_eq_u32 s{sT0}, {r}\ns_cselect_b32 s{sTBL}, {hex(pk[r])}, s{sTBL}")
    e(f"s_cmp_eq_u32 s{sROTO}, 7\ns_cselect_b32 s{sROTO}, 0, s{sROTO}")
    e("s_waitcnt lgkmcnt(0)")
    for srd, p, nb in ((sX,4,1605632),(sWQ,10,3670016),(sK,6,67108864),(sV,8,67108864),(sWO,12,3670016),(sWS,18,268435456),(sOUT,14,1605632)):
        e(f"s_mov_b32 s{srd}, s{p}\ns_mov_b32 s{srd+1}, s{p+1}\ns_mov_b32 s{srd+2}, {nb}\ns_mov_b32 s{srd+3}, 0x20000")
    e(f"s_cmp_lt_u32 s{sWAVE}, 4\ns_cbranch_scc1 LA_compute")

    if cfg.prio_h: e(f"s_setprio {cfg.prio_h}")
    vKV, vW, vXX, vO = 2, 3, 4, 5
    e(f"s_sub_u32 s{sWAVE}, s{sWAVE}, 4")
    e(f"""v_lshrrev_b32 v8, 3, v0
v_mul_u32_u24 v{vXX}, {16*896}, v8
v_and_b32 v9, 7, v0
v_lshl_add_u32 v{vXX}, v9, 4, v{vXX}
v_cmp_eq_u32 vcc, 7, v8
v_mov_b32 v10, 0x70000000
v_lshrrev_b32 v6, 5, v0
v_cndmask_b32 v{vXX}, v{vXX}, v10, vcc
v_and_b32 v7, 31, v0
v_lshlrev_b32 v7, 4, v7
v_lshl_add_u32 v{vW}, v6, 15, v7""")
    e(f"""s_mul_i32 s{sLV}, s{sWAVE}, {4*ST}
s_lshl_b32 s{sWOFF}, s{sH}, 9
s_lshl_b32 s{sT0}, s{sWAVE}, 16
s_add_u32 s{sWOFF}, s{sWOFF}, s{sT0}
s_mul_i32 s{sXOFF}, s{sG}, 112
s_lshl_b32 s{sT0}, s{sWAVE}, 2
s_add_u32 s{sXOFF}, s{sXOFF}, s{sT0}
s_mul_i32 s{sXOFF}, s{sXOFF}, 896""")
    def dma(srd, voff, sreg, simm, mreg, mimm, nt=False):
        e(f"s_add_u32 m0, s{mreg}, {mimm}\ns_add_u32 s{sT0}, s{sreg}, {simm}\nbuffer_load_dwordx4 v{voff}, {sr(srd)}, s{sT0} offen {'nt ' if nt else ''}lds")
    def adv_ch():
        e(f"s_add_u32 s{sCH}, s{sCH}, 1\ns_cmp_eq_u32 s{sCH}, 7\ns_cselect_b32 s{sCH}, 0, s{sCH}")
    def koff(j): return j*1024 + 16*((j & 1) + 4*(j >> 1))
    def issue(n, kvbase=0):
        if n <= 6:
            sl = (n + 2) % 3
            e(f"s_bfe_u32 s{sCH}, s{sTBL}, {hex(0x30000 | (4*n))}")
            e(f"s_lshl_b32 s{sT1}, s{sCH}, 7\ns_add_u32 s{sT1}, s{sT1}, s{sXOFF}\ns_lshl_b32 s{sT2}, s{sCH}, 19\ns_add_u32 s{sT2}, s{sT2}, s{sWOFF}")
            for j in range(4): dma(sX, vXX, sT1, j*896, sLV, XBASE + sl*XT + j*ST)
            for a in range(2):
                for j in range(4): dma(sWQ, vW, sT2, (32*a + j)*8192, sLV, sl*PAIR + a*HALF + j*ST)
            return 12
        sl = (n + 1) % 4
        if n <= 39:
            i = n - 8; c = 0
            if cfg.nokv and n > 10: return 0
            if i + 1 <= 31:
                for j in range(4): dma(sK, vKV, sKVOFF, (i+1-kvbase)*16384 + j*512, sLV, sl*PAIR + koff(j), cfg.nt_kv)
                c += 4
            if i >= 0:
                for j in range(4): dma(sV, vKV, sKVOFF, (i-kvbase)*16384 + j*512, sLV, sl*PAIR + HALF + j*ST, cfg.nt_kv)
                c += 4
            return c
        e(f"s_lshl_b32 s{sT1}, s{sCH}, 7\ns_add_u32 s{sT1}, s{sT1}, s{sOOFF}")
        for j in range(8): dma(sWO, vO, sT1, j*8*896, sLO, sl*PAIR + (0 if sl % 2 else OBIAS) + j*1024)
        adv_ch()
        return 8
    assert 4*ST == 4096 + 128
    out = []
    def do_issue(n, kvbase=0): out.append((n, issue(n, kvbase)))
    def wait_step(n):
        while out and out[0][0] <= n: out.pop(0)
        e(f"s_waitcnt vmcnt({sum(c for _, c in out)})")
    do_issue(0)
    e("s_getpc_b64 s[68:69]\nLA_pc:")
    e(f"s_sub_u32 s68, s68, LA_pc-{KA}\ns_subb_u32 s69, s69, 0")
    e(f"v_lshlrev_b32 v11, 7, v0\ns_lshl_b32 s{sT0}, s{sWAVE}, 13\nv_add_u32 v11, s{sT0}, v11\nv_min_u32 v11, LA_endoftext-{KA}-4, v11")
    e("global_load_dword v12, v11, s[68:69]")
    out.append((1, 1))
    do_issue(1); do_issue(2)
    e(f"""v_lshl_add_u32 v{vKV}, v6, 13, v7
v_mul_u32_u24 v{vO}, 896, v8
v_bfe_u32 v8, v0, 4, 2
v_lshlrev_b32 v8, 1, v8
v_xor_b32 v8, v8, v9
v_lshl_add_u32 v{vO}, v8, 4, v{vO}
s_lshl_b32 s{sLO}, s{sWAVE}, 13
s_lshl_b32 s{sKVOFF}, s{sB}, 4
s_add_u32 s{sKVOFF}, s{sKVOFF}, s{sH}
s_lshl_b32 s{sKVOFF}, s{sKVOFF}, 19
s_lshl_b32 s{sT0}, s{sWAVE}, 11
s_add_u32 s{sKVOFF}, s{sKVOFF}, s{sT0}
s_lshl_b32 s{sOOFF}, s{sH}, 8
s_lshl_b32 s{sT0}, s{sWAVE}, 6
s_add_u32 s{sOOFF}, s{sOOFF}, s{sT0}
s_mul_i32 s{sOOFF}, s{sOOFF}, 896""")
    sched = {1:[3],2:[4],3:[5],4:[6],5:[7],6:[8],7:[9,10]}
    for n in range(0, 8):
        wait_step(n); e("s_barrier")
        for s_ in sched.get(n, []): do_issue(s_)
    e(f"s_mov_b32 s{sCNT}, 7")
    e("LA_hloop:")
    entry = [c for _, c in out]
    for n in range(8, 12):
        wait_step(n); e("s_barrier"); do_issue(n+3)
    assert cfg.nokv or [c for _, c in out] == entry
    e(f"s_add_u32 s{sKVOFF}, s{sKVOFF}, {4*16384}\ns_sub_u32 s{sCNT}, s{sCNT}, 1\ns_cmp_lg_u32 s{sCNT}, 0\ns_cbranch_scc1 LA_hloop")
    out = [(s_ + 24, c) for s_, c in out]
    e(f"s_mov_b32 s{sCH}, s{sROTO}")
    for n in range(36, 45):
        wait_step(n if n < 44 else 46)
        e("s_barrier")
        if n + 3 <= 46: do_issue(n+3, kvbase=28)
    e(f"s_cmp_ge_u32 s{sH}, {0 if cfg.noreduce else 14}\ns_cbranch_scc1 LA_end")
    e(f"s_lshl_b32 s{sT0}, s{sG}, 2\nv_mov_b32 v6, s{sT0}\ns_mov_b32 s{sT1}, 30000")
    e(f"global_load_dword v7, v6, s[16:17]")
    hw = sT2
    sPB, sFB, sOB, sJ, sTO = sXOFF, sKVOFF, sOOFF, sCNT, sDELTA
    e(f"""s_lshr_b32 s{hw}, s{sH}, 2
s_lshl_b32 s{sPB}, s{sG}, 6
s_add_u32 s{sPB}, s{sPB}, s{hw}
s_mul_i32 s{sPB}, s{sPB}, {28*1024}
s_bfe_u32 s{sT0}, s{sH}, 0x10001
s_lshl_b32 s{sT0}, s{sT0}, 11
s_add_u32 s{sPB}, s{sPB}, s{sT0}
s_and_b32 s{sT0}, s{sH}, 1
s_lshl_b32 s{sT0}, s{sT0}, 7
s_add_u32 s{sPB}, s{sPB}, s{sT0}
s_mul_i32 s{sFB}, s{sG}, 28
s_add_u32 s{sFB}, s{sFB}, s{hw}
s_mul_i32 s{sFB}, s{sFB}, {cfg.fstride}
s_add_u32 s{sFB}, s{sFB}, {FLAGBASE}
s_mul_i32 s{sOB}, s{sG}, 112
s_lshl_b32 s{sT0}, s{sH}, 3
s_add_u32 s{sOB}, s{sOB}, s{sT0}
s_mul_i32 s{sOB}, s{sOB}, 896
s_mov_b32 s{sJ}, s{sWAVE}
v_lshrrev_b32 v8, 3, v0
v_and_b32 v9, 7, v0
v_lshlrev_b32 v2, 8, v8
v_lshl_add_u32 v2, v9, 4, v2
v_mul_u32_u24 v3, 896, v9
v_lshrrev_b32 v10, 5, v0
v_lshl_add_u32 v3, v10, 6, v3
v_and_b32 v8, 3, v8
v_lshl_add_u32 v3, v8, 3, v3
v_mov_b32 v4, 0
s_waitcnt vmcnt(0)
v_cmp_eq_u32 vcc, 0, v7
s_cbranch_vccz LA_rloop""")
    e("LA_hn:")
    e(f"""global_load_dword v7, v6, s[16:17] sc0 sc1
s_sub_u32 s{sT1}, s{sT1}, 1
s_waitcnt vmcnt(0)
v_cmp_eq_u32 vcc, 0, v7
s_cbranch_vccz LA_rloop
s_cmp_lg_u32 s{sT1}, 0
s_cbranch_scc1 LA_hn""")
    e("LA_rloop:")
    e(f"""s_add_u32 s{sCH}, s{sROTO}, s{sJ}
s_sub_u32 s{sT0}, s{sCH}, 7
s_cmp_ge_u32 s{sCH}, 7
s_cselect_b32 s{sCH}, s{sT0}, s{sCH}
s_mul_i32 s{sT1}, s{sCH}, {4*cfg.fstride}
s_add_u32 s{sT1}, s{sT1}, s{sFB}
s_mov_b32 s{sTO}, 30000
s_mov_b64 exec, 1""")
    if cfg.stamps: e("s_memrealtime s[76:77]")
    e("LA_poll:")
    e(f"""v_mov_b32 v84, 0
s_sub_u32 s{sTO}, s{sTO}, 1
buffer_atomic_add v84, v4, {sr(sWS)}, s{sT1} offen sc0 sc1
s_waitcnt vmcnt(0)
v_cmp_ne_u32 vcc, 16, v84
s_cbranch_vccz LA_go
s_sleep {cfg.sleep}
s_cmp_lg_u32 s{sTO}, 0
s_cbranch_scc1 LA_poll""")
    e("LA_go:")
    e("s_mov_b64 exec, -1")
    if cfg.stamps: e("s_memrealtime s[78:79]")
    e(f"s_lshl_b32 s{sT0}, s{sCH}, 12\ns_add_u32 s{sT0}, s{sT0}, s{sPB}")
    for h in range(16):
        if cfg.rb < 16 and h and h % cfg.rb == 0:
            e(f"s_cmp_ge_u32 s{sJ}, 4\ns_cbranch_scc1 LA_rb{h}\ns_waitcnt vmcnt(0)\nLA_rb{h}:")
        e(f"buffer_load_dwordx4 {vr(16+4*h,4)}, v2, {sr(sWS)}, s{sT0} offen {cfg.ld_flags}")
        if h < 15: e(f"s_add_u32 s{sT0}, s{sT0}, {4*28*1024}")
    for h in range(16):
        e(f"s_waitcnt vmcnt({15-h})")
        for k in range(4):
            r = 16 + 4*h + k
            if h == 0:
                e(f"v_lshlrev_b32 v{8+2*k}, 16, v{r}\nv_and_b32 v{9+2*k}, 0xffff0000, v{r}")
            else:
                e(f"v_lshlrev_b32 v5, 16, v{r}\nv_and_b32 v6, 0xffff0000, v{r}\nv_add_f32 v{8+2*k}, v{8+2*k}, v5\nv_add_f32 v{9+2*k}, v{9+2*k}, v6")
    if cfg.stamps: e("s_memrealtime s[80:81]")
    for k in range(4): e(f"v_cvt_pk_bf16_f32 v{80+k}, v{8+2*k}, v{9+2*k}")
    e(f"s_lshl_b32 s{sT0}, s{sCH}, 7\ns_add_u32 s{sT0}, s{sT0}, s{sOB}")
    e(f"buffer_store_dwordx2 v[80:81], v3, {sr(sOUT)}, s{sT0} offen {cfg.out_flags}")
    e(f"buffer_store_dwordx2 v[82:83], v3, {sr(sOUT)}, s{sT0} offen offset:32 {cfg.out_flags}")
    e(f"s_add_u32 s{sJ}, s{sJ}, 4\ns_cmp_lt_u32 s{sJ}, 7\ns_cbranch_scc1 LA_rloop")
    if cfg.stamps:
        e(f"s_waitcnt vmcnt(0) lgkmcnt(0)")
        e(f"v_mov_b32 v0, s76\nv_mov_b32 v1, s78\nv_mov_b32 v2, s{sTO}\nv_mov_b32 v3, s80\nv_mov_b32 v8, 0")
        e(f"s_lshl_b32 s{sT0}, s2, 2\ns_add_u32 s{sT0}, s{sT0}, s{sWAVE}\ns_lshl_b32 s{sT0}, s{sT0}, 4\ns_add_u32 s{sT0}, s{sT0}, 0x8100000\ns_mov_b64 exec, 1")
        e(f"buffer_store_dwordx4 v[0:3], v8, {sr(sWS)}, s{sT0} offen")
    e("LA_end:\ns_endpgm")

    e(".p2align 6\nLA_compute:")
    if cfg.prio_c: e(f"s_setprio {cfg.prio_c}")
    stamp()
    t = SA
    ln = vT3
    e(f"v_mov_b32 v{ln}, v0\ns_mov_b32 s{sC}, {hex(f2u(C_SCALE))}")
    e(f"""v_lshrrev_b32 v{t}, 4, v{ln}
v_and_b32 v{t+1}, 15, v{ln}
v_lshrrev_b32 v{t+2}, 2, v{ln}
v_and_b32 v{t+3}, 3, v{ln}
v_mul_u32_u24 v{vT0}, {ST}, v{t+2}
v_lshl_add_u32 v{vT0}, v{t+3}, 3, v{vT0}
v_add_u32 v{vAV}, {2*PAIR}, v{vT0}
v_mul_u32_u24 v{vAK}, {ST}, v{t+1}
v_lshl_add_u32 v{vAK}, v{t}, 4, v{vAK}
s_lshl_b32 s{sT0}, s{sWAVE}, 8
s_add_u32 s{sT0}, s{sT0}, {XBASE + 2*XT}
v_add_u32 v{vAK}, s{sT0}, v{vAK}
v_lshrrev_b32 v{t+4}, 1, v{t+1}
v_and_b32 v{t+5}, 1, v{ln}
v_lshl_add_u32 v{t+4}, v{t+4}, 2, v{t+5}
v_bfe_u32 v{t+5}, v{ln}, 4, 1
v_lshl_add_u32 v{t+4}, v{t+5}, 1, v{t+4}
v_lshrrev_b32 v{t+5}, 5, v{ln}
v_add_u32 v{t+4}, v{t+4}, v{t+5}
v_lshlrev_b32 v{vT1}, 10, v{t+1}
v_lshl_add_u32 v{vT1}, v{t+4}, 4, v{vT1}""")
    e(f"s_or_b32 s{sT0}, s{sWAVE}, s{sH}\ns_cmp_lg_u32 s{sT0}, 0\ns_cbranch_scc1 LA_noinit")
    e(f"s_mul_i32 s{sT0}, s{sG}, {28*cfg.fstride}\ns_add_u32 s{sT0}, s{sT0}, {FLAGBASE}")
    e(f"v_mul_u32_u24 v{Q0}, {cfg.fstride}, v{ln}\nv_mov_b32 v{Q0+1}, 0\ns_mov_b64 exec, 0xfffffff")
    e(f"buffer_store_dword v{Q0+1}, v{Q0}, {sr(sWS)}, s{sT0} offen sc0 sc1\ns_mov_b64 exec, -1")
    e("LA_noinit:")
    for i in range(0, 128, 2): e(f"v_mov_b64 {vr(i,2)}, 0")
    e(f"v_mov_b64 {vr(vL,2)}, 0")
    e(f"s_mov_b32 s{sCNT}, 6\ns_mov_b32 s{sIDX}, 2")
    if cfg.w3: e(f"s_cmp_eq_u32 s{sWAVE}, 3\ns_cbranch_scc1 LA_c1")
    nst0 = nst[0]

    def compute(nq):
        sfx = str(nq)
        nst[0] = nst0
        e.q = []
        e("s_barrier")
        stamp()
        qp = u_qp(nq)
        def xload(i): return (f"ds_read_b128 {vr(SB+4*i,4)}, v{vAK} offset:{(i & 1)*128 + (i >> 1)*64}", f"x{i}")
        x0 = [xload(i) for i in range(nq)]; x1 = [xload(2+i) for i in range(nq)]
        for it in x0: e.ds(*it)
        for mm in range(5):
            for ld in qp[mm].loads: e.ds(ld(F0+4*mm), ("qp", mm))
        e.waitall()
        e(f".p2align 3\nLA_qp{sfx}:")
        adv = {40: [f"s_add_u32 s{sIDX}, s{sIDX}, 1", f"s_cmp_eq_u32 s{sIDX}, 3"],
               42: [f"s_cselect_b32 s{sIDX}, 0, s{sIDX}", f"s_cselect_b32 s{sDELTA}, -2, 1"],
               44: [f"s_mul_i32 s{sD2}, s{sDELTA}, {XT}", f"s_mul_i32 s{sDELTA}, s{sDELTA}, {PAIR}"],
               53: [f"v_add_u32 v{vAV}, s{sDELTA}, v{vAV}", f"v_add_u32 v{vAK}, s{sD2}, v{vAK}"],
               54: [f"s_sub_u32 s{sCNT}, s{sCNT}, 1"],
               63: [f"s_cmp_lg_u32 s{sCNT}, 0"]}
        fill = dict(adv); fill[5] = [x1[0]]
        if nq == 2: fill[9] = [x1[1]]
        sv = (list(e.L), list(e.q))
        emit_block(e, cfg, "qp", qp, qp, fill, "qpn", split=True, post={1: x0})
        rename(e, "qpn", "qp"); steady = list(e.q)
        e.L, e.q = sv[0], list(steady)
        emit_block(e, cfg, "qp", qp, qp, fill, "qpn", split=True, post={1: x0})
        rename(e, "qpn", "qp"); assert e.q == steady
        e(f"s_cbranch_scc1 LA_qp{sfx}")
        allu = {(a, dt): qp[a*16+dt] for a in range(2) for dt in range(16)}
        order = [(0, dt) for dt in range(5)]
        for dt in range(16):
            if dt + 5 < 16: order.append((0, dt+5))
            order.append((1, dt))
        ql = [allu[k] for k in order]
        fin = {dt: order.index((1, dt)) for dt in range(16)}
        def qconv(ks):
            ops = []
            for qt in range(nq):
                b = oreg(qt, 2*ks); q = qreg(qt, ks)
                ops += [f"v_mul_f32 v{b+k}, s{sC}, v{b+k}" for k in range(8)]
                ops += [f"v_cvt_pk_bf16_f32 v{q+k}, v{b+2*k}, v{b+2*k+1}" for k in range(4)]
            ops += ["s_nop 0"] if nq == 2 else ["s_nop 1"]
            for qt in range(nq):
                q = qreg(qt, ks)
                ops += [f"v_permlane16_swap_b32 v{q}, v{q+2}", f"v_permlane16_swap_b32 v{q+1}, v{q+3}"]
            return ops
        conv = [(ks, op) for ks in range(8) for op in qconv(ks)]
        fill = {1: [x1[0]]}
        if nq == 2: fill[3] = [x1[1]]
        ci = 0
        for g in range(0, 64):
            cap = 1 if g < 52 else 2
            for _ in range(cap):
                if ci < len(conv) and g >= 2*fin[2*conv[ci][0]+1] + (6 if nq == 2 else 10):
                    fill.setdefault(g, []).append(conv[ci][1]); ci += 1
        fill.setdefault(53, []).insert(0, f"v_mov_b32 v{vAK}, v{vT1}")
        fill.setdefault(54, []).insert(0, f"v_mov_b32 v{vAV}, v{vT0}")
        qk0 = u_qk(SA, 0, nq)
        emit_block(e, cfg, "qp", ql, qk0, fill, "qk0", split=True)
        stamp_q = list(e.q)
        if cfg.stamps: stamp()
        if nq == 2:
            e(f"s_or_b32 s{sT0}, s{sWAVE}, s{sH}\ns_cmp_lg_u32 s{sT0}, 0\ns_cbranch_scc1 LA_noinit2")
            e(f"s_lshl_b32 s{sT0}, s{sG}, 2\nv_mov_b32 v{vT2}, s{sT0}\nv_mov_b32 v{vT3}, 1\ns_mov_b64 exec, 1\ns_waitcnt vmcnt(0)")
            e(f"global_store_dword v{vT2}, v{vT3}, s[16:17] sc0 sc1\ns_mov_b64 exec, -1")
            e("LA_noinit2:")
        rest = conv[ci:]
        e("s_nop 7")
        fill = {}
        hid = []
        capg = 2 if nq == 2 else 1
        slots = []
        g = 2*7 - 3
        j = len(rest) - 1
        while j >= 0 and g >= 0:
            g = min(g, 2*rest[j][0] - 3)
            if g < 0: break
            cap = 2 if g % 2 == 0 else 1
            k = 0
            while k < cap and j >= 0 and g <= 2*rest[j][0] - 3:
                fill.setdefault(g, []).insert(0, rest[j][1]); j -= 1; k += 1
            g -= 1
        for _, op in rest[:j+1]: e(op)
        e("s_nop 1")
        st8 = u_qk(SB, PAIR, nq) + u_pv(SA, PAIR, nq, first=True)
        el = elems(nq)
        ops0 = []
        for k in range(16): ops0 += [sm_exp(SA, el[k]), sm_post(SA, el[k])]
        for i_, u_ in enumerate(range(11, 16)):
            fill.setdefault(2*u_, []).extend(ops0[2*i_]); fill.setdefault(2*u_+1, []).extend((["s_nop 0"] if nq == 1 else []) + ops0[2*i_+1])
        emit_block(e, cfg, "qk0", qk0, st8, fill, "m")
        fill = {}
        for i_, u_ in enumerate(range(2, 13)):
            fill.setdefault(2*u_, []).extend(ops0[10+2*i_]); fill.setdefault(2*u_+1, []).extend((["s_nop 0"] if nq == 1 else []) + ops0[10+2*i_+1])
        sm_tail(fill, SB, nq)
        fill.setdefault(31, []).extend([f"s_mov_b32 s{sCNT}, 15", f"s_mov_b32 s{sDELTA}, {(-2*PAIR) & 0xffffffff}"])
        fill.setdefault(53, []).extend([f"v_add_u32 v{vAK}, {2*PAIR}, v{vAK}", f"v_add_u32 v{vAV}, {2*PAIR}, v{vAV}"])
        lA = u_qk(SA, 0, nq) + u_pv(SB, 0, nq)
        lB = u_qk(SB, PAIR, nq) + u_pv(SA, PAIR, nq)
        emit_block(e, cfg, "m", st8, lA, fill, "mA")
        q_entry = list(e.q)
        e(f".p2align 3\nLA_main{sfx}:")
        fill = {}; sm_head(fill, SB, nq); sm_tail(fill, SA, nq)
        emit_block(e, cfg, "mA", lA, lB, fill, "mB")
        fill = {}; sm_head(fill, SA, nq); sm_tail(fill, SB, nq)
        fill.setdefault(53, []).extend([f"v_add_u32 v{vAK}, s{sDELTA}, v{vAK}", f"v_add_u32 v{vAV}, s{sDELTA}, v{vAV}"])
        fill.setdefault(56, []).insert(0, f"s_sub_u32 s{sDELTA}, 0, s{sDELTA}")
        fill.setdefault(58, []).insert(0, f"s_sub_u32 s{sCNT}, s{sCNT}, 1")
        fill.setdefault(62, []).insert(0, f"s_cmp_lg_u32 s{sCNT}, 0")
        emit_block(e, cfg, "mB", lB, lA, fill, "mA")
        assert e.q == q_entry, (e.q, q_entry)
        e(f"s_cbranch_scc1 LA_main{sfx}")
        stamp()
        rename(e, "mA", "junk")
        pvl = u_pv(SB, 0, nq)
        for mm in range(5):
            for ld in pvl[mm].loads:
                if len(e.q) >= 14: e.wait({e.q[3]})
                e.ds(ld(F0+4*mm), ("pvl", mm))
        hl = sm_head_list(SB, nq)
        ex = [o for ops in hl for o in ops if "exp" in o]; ot = [o for ops in hl for o in ops if "exp" not in o]
        for o in ex: e(o)
        e("s_nop 0")
        for o in ot: e(o)
        e("s_nop 1")
        t = SA
        misc = f"""v_mov_b32 v{t}, v{vL}
v_mov_b32 v{t+1}, v{vL+1}
v_mbcnt_lo_u32_b32 v{t+2}, -1, 0
v_mbcnt_hi_u32_b32 v{t+2}, -1, v{t+2}
v_permlane32_swap_b32 v{t}, v{vL}
v_permlane32_swap_b32 v{t+1}, v{vL+1}
v_add_f32 v{vL}, v{vL}, v{t}
v_add_f32 v{vL+1}, v{vL+1}, v{t+1}
v_mov_b32 v{t}, v{vL}
v_mov_b32 v{t+1}, v{vL+1}
v_lshrrev_b32 v{t+3}, 2, v{t+2}
v_lshlrev_b32 v{t+3}, 7, v{t+3}
v_permlane16_swap_b32 v{t}, v{vL}
v_permlane16_swap_b32 v{t+1}, v{vL+1}
v_add_f32 v{vL}, v{vL}, v{t}
v_add_f32 v{vL+1}, v{vL+1}, v{t+1}
v_bfe_u32 v{t+4}, v{t+2}, 3, 2
v_lshl_add_u32 v{t+3}, v{t+4}, 5, v{t+3}
v_and_b32 v{t+4}, 3, v{t+2}
v_lshl_add_u32 v{t+3}, v{t+4}, 3, v{t+3}
v_add_u32 v{vT0}, {OBIAS}, v{t+3}
v_xor_b32 v{vT1}, 32, v{vT0}
v_xor_b32 v{vT2}, 64, v{vT0}
v_xor_b32 v{vT3}, 0x60, v{vT0}
v_rcp_f32 v{vL}, v{vL}
v_rcp_f32 v{vL+1}, v{vL+1}""".split("\n")
        fill = {}
        rem = spread(fill, misc, range(0, 22, 2), 2)
        rem = spread(fill, rem, [21, 22], 2); assert not rem
        def ocvt(ks): return [f"v_cvt_pk_bf16_f32 v{qreg(qt,ks)+k}, v{oreg(qt,2*ks)+2*k}, v{oreg(qt,2*ks)+2*k+1}" for qt in range(nq) for k in range(4)]
        oc = [o for ks in range(8) for o in ocvt(ks)]
        oc = spread(fill, oc, [23, 24, 26, 28, 30], 2)
        global vAO
        vAO = vT0
        op0 = u_op(ACC0, 32768, nq)
        emit_block(e, cfg, "pvl", pvl, op0, fill, "o0")
        stamp()
        sFL = sD2; sCHF = sIDX
        opA = u_op(ACC1, 0, nq); opB = u_op(ACC0, 32768, nq)
        fill = {}
        oc = spread(fill, oc, range(0, 56), cfg.ocv if nq == 2 else 1)
        assert not oc
        sal = f"""s_lshl_b32 s{sT0}, s{sG}, 4
s_add_u32 s{sT0}, s{sT0}, s{sH}
s_lshl_b32 s{sT0}, s{sT0}, 2
s_add_u32 s{sT0}, s{sT0}, s{sWAVE}
s_mul_i32 s{sSTB}, s{sT0}, {28*1024}
s_mov_b32 s{sCH}, s{sROTO}
s_mul_i32 s{sFL}, s{sG}, 28
s_add_u32 s{sFL}, s{sFL}, s{sWAVE}
s_mul_i32 s{sFL}, s{sFL}, {cfg.fstride}
s_add_u32 s{sFL}, s{sFL}, {FLAGBASE}
s_mov_b32 s{sCHF}, s{sROTO}
s_mov_b32 s{sCNT}, 3
s_mov_b32 s{sDELTA}, {(-2*PAIR) & 0xffffffff}
s_lshl_b32 s{sT0}, s{sG}, 2""".split("\n")
        for i_, o in enumerate(sal): fill.setdefault(2*i_, []).insert(0, o)
        late = f"""v_mov_b32 v{vRD}, s{sT0}
global_load_dword v{vONE}, v{vRD}, s[16:17]
v_mbcnt_lo_u32_b32 v{vSO}, -1, 0
v_mbcnt_hi_u32_b32 v{vSO}, -1, v{vSO}
v_min_u32 v{vFOFF}, 1, v{vSO}
v_mul_u32_u24 v{vFOFF}, 0x700000, v{vFOFF}
v_lshlrev_b32 v{vFOFF}, 8, v{vFOFF}
v_lshlrev_b32 v{vSO}, 4, v{vSO}""".split("\n")
        if nq == 2 and not cfg.w3:
            raise NotImplementedError
        if cfg.early_rd:
            fill.setdefault(1, []).insert(0, f"s_lshl_b32 s{sT1}, s{sG}, 2")
            fill.setdefault(3, []).append(f"v_mov_b32 v{vRD}, s{sT1}")
            fill.setdefault(5, []).append(late[1])
            spread(fill, late[2:], range(56, 64), 1)
        else:
            spread(fill, late, range(32, 48), 1)
        adr = lambda d: [f"v_add_u32 v{vAO+i}, {d}, v{vAO+i}" for i in range(4)]
        fill.setdefault(53, []).extend(adr(2*PAIR)[:2]); fill.setdefault(54, []).extend(adr(2*PAIR)[2:])
        emit_block(e, cfg, "o0", op0, opA, fill, "oA", split=True)
        q_entry = list(e.q)
        nstore = 2*nq
        def flag_items(cnt):
            return [[f"s_mul_i32 s{sT1}, s{sCHF}, {4*cfg.fstride}"], [f"s_add_u32 s{sT1}, s{sT1}, s{sFL}"], [f"s_add_u32 s{sCHF}, s{sCHF}, 1"],
                    [f"s_cmp_eq_u32 s{sCHF}, 7"], [f"s_cselect_b32 s{sCHF}, 0, s{sCHF}"],
                    [f"s_waitcnt vmcnt({cnt})", f"buffer_atomic_add v{vONE}, v{vFOFF}, {sr(sWS)}, s{sT1} offen sc1"]]
        def store_sal():
            return [f"s_lshl_b32 s{sT0}, s{sCH}, 12", f"s_add_u32 s{sT0}, s{sT0}, s{sSTB}", f"s_add_u32 s{sCH}, s{sCH}, 1",
                    f"s_cmp_eq_u32 s{sCH}, 7", f"s_cselect_b32 s{sCH}, 0, s{sCH}"]
        def store_ops(acc, S):
            ops = []
            for p in range(nstore):
                b = acc + 8*p
                ops += [f"v_mul_f32 v{b+k}, v{vL+p//2}, v{b+k}" for k in range(8)]
                ops += [f"v_cvt_pk_bf16_f32 v{S+4*p+k}, v{b+2*k}, v{b+2*k+1}" for k in range(4)]
                if not cfg.nostore: ops += [f"buffer_store_dwordx4 {vr(S+4*p,4)}, v{vSO}, {sr(sWS)}, s{sT0} offen offset:{p*1024} {cfg.st_flags}"]
            return ops
        def op_fill(acc, S, first):
            f = {}
            rem = spread(f, store_ops(acc, S), range(4, 60), 1); assert not rem
            for i_, o in enumerate(store_sal()): f.setdefault(2*i_, []).insert(0, o)
            fi = flag_items(cfg_cnt)
            if first:
                fi = [[f"s_mul_i32 s{sT1}, s{sCHF}, {4*cfg.fstride}"], [f"s_add_u32 s{sT1}, s{sT1}, s{sFL}"], [f"s_add_u32 s{sT2}, s{sCHF}, 1"],
                      [f"s_cmp_eq_u32 s{sT2}, 7"], [f"s_cselect_b32 s{sT2}, 0, s{sT2}"], [f"s_cmp_eq_u32 s{sCNT}, 3"],
                      [f"s_cselect_b32 s{sT1}, 0x7ff00000, s{sT1}"], [f"s_cselect_b32 s{sCHF}, s{sCHF}, s{sT2}"], fi[-1]]
            g0 = 12
            for i_, it in enumerate(fi):
                g = g0 + 2*i_ if i_ < len(fi)-1 else FG
                f[g] = it + f.get(g, []) if i_ < len(fi)-1 else f.get(g, []) + it
            return f
        FG = 2*cfg.flag_unit
        cfg_cnt = sum(1 for p in range(nstore) if 4 + 13*p + 12 <= FG)
        last_cnt = nstore
        if cfg_cnt == nstore: cfg_cnt += 1; last_cnt += 1
        if cfg.nowait: cfg_cnt = 20
        e(f"s_waitcnt vmcnt(0)\nv_cmp_eq_u32 vcc, 0, v{vONE}\ns_cbranch_vccnz LA_nretry{sfx}\nLA_nret{sfx}:")
        e(f".p2align 3\nLA_op{sfx}:")
        fill = op_fill(ACC0, STG0, True)
        emit_block(e, cfg, "oA", opA, opB, fill, "oB", barrier=(f"s_cmp_lt_u32 s{sCNT}, 2", f"LA_nb1{sfx}"), split=True)
        fill = op_fill(ACC1, STG1, False)
        fill.setdefault(53, []).extend(adr(f"s{sDELTA}")[:2]); fill.setdefault(55, []).extend(adr(f"s{sDELTA}")[2:])
        fill.setdefault(58, []).insert(0, f"s_sub_u32 s{sDELTA}, 0, s{sDELTA}")
        fill.setdefault(60, []).insert(0, f"s_sub_u32 s{sCNT}, s{sCNT}, 1")
        fill.setdefault(62, []).insert(0, f"s_cmp_lg_u32 s{sCNT}, 0")
        emit_block(e, cfg, "oB", opB, opA, fill, "oA", barrier=(f"s_cmp_lt_u32 s{sCNT}, 3", f"LA_nb2{sfx}"), split=True)
        assert e.q == q_entry
        e(f"s_cbranch_scc1 LA_op{sfx}")
        e("s_nop 3")
        for o in store_sal() + store_ops(ACC0, STG0): e(o)
        for it in flag_items(last_cnt) + flag_items(1):
            for o in it: e(o)
        if cfg.stamps:
            stamp()
            e("s_waitcnt vmcnt(0)")
            stamp()
            n = nst[0]
            for i in range(16): e(f"v_mov_b32 v{i}, s{72+i}" if (i % 8) < n else f"v_mov_b32 v{i}, 0")
            e("v_mov_b32 v7, s98")
            e(f"s_lshl_b32 s{sT0}, s2, 3\ns_add_u32 s{sT0}, s{sT0}, s{sWAVE}\ns_lshl_b32 s{sT0}, s{sT0}, 6\ns_add_u32 s{sT0}, s{sT0}, 0x8000000")
            e(f"v_mov_b32 v16, 0\ns_mov_b64 exec, 1")
            for i in range(4): e(f"buffer_store_dwordx4 v[{4*i}:{4*i+3}], v16, {sr(sWS)}, s{sT0} offen offset:{16*i}")
        e("s_endpgm")
        e(f"LA_nretry{sfx}:")
        e(f"s_mov_b32 s{sT1}, 30000")
        e(f"LA_nretry1{sfx}:")
        e(f"""global_load_dword v{vONE}, v{vRD}, s[16:17] sc0 sc1
s_sub_u32 s{sT1}, s{sT1}, 1
s_waitcnt vmcnt(0)
v_cmp_eq_u32 vcc, 0, v{vONE}
s_cbranch_vccz LA_nret{sfx}
s_cmp_lg_u32 s{sT1}, 0
s_cbranch_scc1 LA_nretry1{sfx}
s_branch LA_nret{sfx}""")
    compute(2)
    if cfg.w3:
        e(".p2align 6\nLA_c1:")
        compute(1)
    e("LA_endoftext:")
    kd = f""".amdhsa_kernel {KA}
  .amdhsa_next_free_vgpr 256
  .amdhsa_next_free_sgpr 100
  .amdhsa_accum_offset 256
  .amdhsa_group_segment_fixed_size 0
  .amdhsa_kernarg_size 64
  .amdhsa_user_sgpr_count 2
  .amdhsa_user_sgpr_kernarg_segment_ptr 1
  .amdhsa_system_sgpr_workgroup_id_x 1
.end_amdhsa_kernel
"""
    return hdr + "\n" + "\n".join(e.L) + '\n.section .rodata,"a"\n.p2align 6\n' + kd

if __name__ == "__main__":
    cfg = Cfg()
    for a in sys.argv[2:]:
        k, v = a.split("=")
        cur = getattr(cfg, k)
        setattr(cfg, k, type(cur)(eval(v)) if not isinstance(cur, str) else v.replace("+", " "))
    open(sys.argv[1], "w").write(gen(cfg))
```

```python
import sys, math, struct

def f2u(x): return struct.unpack("<I", struct.pack("<f", x))[0]

class Cfg:
    nt_kv = True
    st_flags = "sc0 sc1"
    ld_flags = "sc0 sc1"
    out_flags = ""
    stamps = False
    prio_c = 3
    prio_h = 0
    formal = True
    fstride = 4352
    sleep = 8
    flag_unit = 30
    rotq = 2
    w3 = True
    nokv = False
    nowait = False
    noreduce = False
    T = 30
    nowo = False
    hst = False
    half0 = True
    pre1 = 8
    nopf = False
    lastbar = 44
    force = False
    convA = 2
    convC = 3
    rb = 16
    nostore = False
    early_rd = True

ST = 1056; HALF = 16896; PAIR = 33792
XBASE = 3 * PAIR; XT = HALF
OBIAS = PAIR - 32768
LDS_BYTES = 163840
C_SCALE = math.log2(math.e) / 16.0
FLAGBASE = 0x2000000
LDS_FLAG = 152064
LDS_NEG = 152320
sMODE = 97; sRDY = 49
vNEG = 252; vMX = 254

O0 = 0; Q0 = 128; SA = 192; SB = 208; F0 = 224
vAK = 248; vAV = 249; vL = 250
vT0 = 252; vT1 = 253; vT2 = 254; vT3 = 255
ACC0 = 192; ACC1 = 0; STG0 = 32; STG1 = 48
vAO = 64
vSO = 68; vFOFF = 69; vONE = 70; vRD = 71
sX, sK, sV, sWQ, sWO, sWS, sOUT = 20, 24, 28, 32, 36, 40, 92
sWAVE, sB, sH, sHALF, sTBL = 44, 45, 46, 47, 48
sC = 68
sT0, sT1, sT2, sT3 = 50, 51, 52, 53
sCNT = 54; sDELTA = 55; sIDX = 56; sD2 = 57; sSTB = 58; sCH = 59
sLK, sLV, sLO = 60, 61, 62
sWOFF, sXOFF, sKVOFF, sOOFF = 63, 64, 65, 66
sROTO = 67; sG = 96
sSTAMP = 70

def vr(a, n): return f"v[{a}:{a+n-1}]"
def sr(a, n=4): return f"s[{a}:{a+n-1}]"

class Em:
    def __init__(self):
        self.L = []; self.q = []
    def __call__(self, s):
        for l in s.split("\n"):
            self.L.append("    " + l if not l.endswith(":") else l)
    def ds(self, s, tag):
        self(s); self.q.append(tag)
    def wait(self, tags):
        idx = -1
        for i, t in enumerate(self.q):
            if t in tags: idx = i
        if idx < 0: return False
        nn = min(len(self.q) - 1 - idx, 15)
        self(f"s_waitcnt lgkmcnt({nn})")
        self.q = self.q[len(self.q)-nn:] if nn else []
        return True
    def waitall(self):
        self("s_waitcnt lgkmcnt(0)"); self.q = []

class U:
    def __init__(self, mf, loads, extra=()):
        self.mf, self.loads, self.extra = mf, loads, tuple(extra)

def kload(off): return [lambda f, o=off: f"ds_read_b128 {vr(f,4)}, v{vAK} offset:{o}"]
def trload(a, o0, o1):
    return [lambda f, o=o0: f"ds_read_b64_tr_b16 {vr(f,2)}, v{a} offset:{o}",
            lambda f, o=o1: f"ds_read_b64_tr_b16 {vr(f+2,2)}, v{a} offset:{o}"]
def oreg(qt, dt): return O0 + 64*qt + 4*dt
def qreg(qt, ks): return Q0 + 32*qt + 4*ks

def u_qk(Y, base, nq, ksmajor=False):
    order = [(kt, ks) for ks in range(8) for kt in range(2)] if ksmajor else [(kt, ks) for kt in range(2) for ks in range(8)]
    return [U([(vr(Y+8*qt+4*kt,4), vr(qreg(qt,ks),4), "0" if ks == 0 else vr(Y+8*qt+4*kt,4)) for qt in range(nq)],
              kload(base + kt*512 + ks*64)) for kt, ks in order]
def u_pv(X, base, nq, first=False):
    return [U([(vr(oreg(qt,dt),4), vr(X+8*qt,4), "0" if first else vr(oreg(qt,dt),4)) for qt in range(nq)],
              trload(vAV, base + HALF + dt*32, base + HALF + 512 + dt*32)) for dt in range(16)]
def u_qp(nq, dtmajor=False):
    order = [(a, dt) for dt in range(16) for a in range(2)] if dtmajor else [(a, dt) for a in range(2) for dt in range(16)]
    return [U([(vr(oreg(qt,dt),4), vr(SB+4*(2*a+qt),4), vr(oreg(qt,dt),4)) for qt in range(nq)],
              trload(vAV, a*HALF + dt*32, a*HALF + 512 + dt*32), extra=[f"x{2*a+qt}" for qt in range(nq)]) for a, dt in order]
def u_op(acc, base, nq):
    return [U([(vr(acc+16*qt+4*nt,4), vr(qreg(qt,ks),4), "0" if ks == 0 else vr(acc+16*qt+4*nt,4)) for qt in range(nq)],
              trload(vAO+nt, base + ks*4096, base + ks*4096 + 2048)) for ks in range(8) for nt in range(4)]

def is_scalar(op): return isinstance(op, str) and (op.startswith("s_") or op.endswith(":"))
def cost(op):
    if isinstance(op, tuple): return 1
    if op.startswith("v_exp") or op.startswith("v_rcp"): return 2
    return 1

FB6 = [F0 + 4*i for i in range(6)]
class Plan:
    def __init__(self, n, kind, bufs):
        self.n, self.kind, self.bufs = n, kind, bufs
        if kind == 6:
            self.pre = 5
            self.seq = ([0,1,2,3,4]*4 + [0,1,2,3,4,5]*2) if n == 32 else ([0,1,2,3,4]*2 + [0,1,2,3,4,5])
        else:
            self.pre = 6
            self.seq = [m % 8 for m in range(n)]
    def reg(self, m): return self.bufs[self.seq[m]]

def emit_block(e, cfg, name, us, plan, nxt, nplan, nxtname, fixed=None, streams=(), barrier=True, post=None, scal=(), force=None):
    n = len(us); G = 2*n
    two = len(us[0].mf) == 2
    D = {g: [] for g in range(G)}; V = {g: [] for g in range(G)}; S = {g: [] for g in range(G)}
    for g, ops in (fixed or {}).items():
        for op in ops:
            (D if isinstance(op, tuple) else S if is_scalar(op) and not V[g] and not op.startswith("s_nop") and not op.startswith("s_waitcnt") else V)[g].append(op)
    def rd(u, pl, m, nm): return [(ld(pl.reg(m)), (nm, m)) for ld in u.loads]
    if plan.kind == 6:
        ig = {m: (m-5 if m <= n-8 else m-6) for m in range(n)} if n == 32 else {m: m-5 for m in range(n)}
        if n == 16: ig[15] = 9
        for m in range(plan.pre, n):
            r = rd(us[m], plan, m, name); g = 2*ig[m] + 1
            if n == 32 and m == n-7:
                gs = cfg_extra_gaps if len(r) == 2 else [g]
                for it, gg in zip(r, gs): D[gg].append(it)
                continue
            if len(D[g]) + len(r) > 2: g += 1
            D[g] += r
        bar = G - 9
    else:
        rs = [it for m in range(plan.pre, n) for it in rd(us[m], plan, m, name)]
        per = len(us[0].loads)
        assert per == 2
        k = 0; acc_from = 36
        for g in range(1, G):
            cap = 2 if (g >= acc_from and g % 2 == 1) else 1
            while cap and k < len(rs):
                m = rs[k][1][1]
                if g < 2*(m-8) + 1: break
                D[g].append(rs[k]); k += 1; cap -= 1
            if k == len(rs): last = g; break
        bar = last + 4
    if nxt is not None:
        rs = (post or []) + [it for m in range(nplan.pre) for it in rd(nxt[m], nplan, m, nxtname)]
        busy = {}
        for m in range(n): busy[plan.reg(m)] = 2*m + 1
        g = bar + 1; left = len(rs)
        for it in rs:
            fr = busy.get(nplan.reg(it[1][1]), -1) if isinstance(it[1], tuple) else -1
            while True:
                room = 2 - len(D[g]) - sum(cost(o) for o in V[g])
                want2 = left > (G - g - (1 if D[g] else 0))
                if g >= fr and (g == G-1 or (room > 0 and (not D[g] or want2))): break
                g += 1
            D[g].append(it); left -= 1
    left_over = []
    for st in streams:
        g = 0; k = 0
        while k < len(st) and g < G:
            op, eg = st[k]
            room = 2 - len(D[g]) - sum(cost(o) for o in V[g])
            if g >= eg and room >= cost(op): V[g].append(op); k += 1
            else: g += 1
        left_over.append(st[k:])
    for g, ops in (force or {}).items(): V[g] += ops
    if scal:
        g = scal[0]
        for op in scal[1:]:
            while g % 2 == 1 or S[g]: g += 1
            S[g].append(op)
    def put(g, wait=None):
        for op in S[g]: e(op)
        if wait: e.wait(wait)
        for it in D[g]: e.ds(*it)
        for op in V[g]: e(op)
        if g == bar and barrier:
            if cfg.formal: e.waitall()
            if barrier is True: e("s_barrier")
            else:
                e(barrier[0]); e(f"s_cbranch_scc1 {barrier[1]}"); e("s_barrier"); e(f"{barrier[1]}:")
    e.wait({(name, 0)} | set(us[0].extra))
    for m in range(n):
        u = us[m]; A = vr(plan.reg(m), 4)
        w = ({(name, m+1)} | set(us[m+1].extra)) if m + 1 < n else (({(nxtname, 0)} | set(nxt[0].extra)) if nxt is not None else None)
        d, b, c = u.mf[0]
        e(f"v_mfma_f32_16x16x32_bf16 {d}, {A}, {b}, {c}")
        put(2*m)
        if two:
            d, b, c = u.mf[1]
            e(f"v_mfma_f32_16x16x32_bf16 {d}, {A}, {b}, {c}")
        elif V[2*m] and V[2*m][-1].startswith(("v_exp", "v_rcp")): e("s_nop 0")
        put(2*m+1, w)
    return left_over, bar
cfg_extra_gaps = [17, 19]

def rename(e, old, new):
    e.q = [((new, t[1]) if isinstance(t, tuple) and t[0] == old else t) for t in e.q]

def elems(nq):
    o = [(0,0),(0,1),(0,2),(0,3),(1,0),(1,1),(1,2),(1,3),(0,4),(0,5),(0,6),(0,7),(1,4),(1,5),(1,6),(1,7)]
    return [x if x[0] < nq else None for x in o]
GEN = [False]
def sm_exp(S, el):
    if el is None: return []
    r = S + 8*el[0] + el[1]
    pre = [f"v_max_f32 v{vMX+el[0]}, v{vMX+el[0]}, v{r}", f"v_add_f32 v{r}, v{vNEG+el[0]}, v{r}"] if GEN[0] else []
    return pre + [f"v_exp_f32 v{r}, v{r}"]
def sm_post(S, el):
    if el is None: return []
    r = S + 8*el[0]
    o = [f"v_add_f32 v{vL+el[0]}, v{vL+el[0]}, v{r+el[1]}"]
    if el[1] % 2: o.append(f"v_cvt_pk_bf16_f32 v{r+el[1]//2}, v{r+el[1]-1}, v{r+el[1]}")
    return o
SM0 = 14
def sm_tail(fill, Y, nq):
    el = elems(nq)
    for u in range(SM0, 32):
        k = u - SM0
        fill.setdefault(2*u, []).extend(sm_exp(Y, el[k//2]) if k % 2 == 0 else sm_post(Y, el[k//2]))
def sm_head_list(X, nq):
    el = elems(nq); r = []
    for u in range(32, SM0 + 32):
        k = u - SM0
        r.append(sm_exp(X, el[k//2]) if k % 2 == 0 else sm_post(X, el[k//2]))
    return r
def sm_head(fill, X, nq):
    for u, ops in enumerate(sm_head_list(X, nq)): fill.setdefault(2*u, []).extend(ops)

def spread(fill, ops, gaps, per):
    i = 0
    for g in gaps:
        for _ in range(per):
            if i < len(ops): fill.setdefault(g, []).append(ops[i]); i += 1
    return ops[i:]

def gen(cfg):
    e = Em()
    KA = "standalone__mha_block_cached__near_ridge_kernel"
    hdr = f"""; fused MHA block: Q projection + attention + output projection + cross-workgroup head reduction
; @launch grid=(256,1,1) block=(512,1,1) lds={LDS_BYTES}
.amdgcn_target "amdgcn-amd-amdhsa--gfx950"
.text
.globl {KA}
.p2align 8
.type {KA},@function
{KA}:"""
    nst = [0]
    def stamp():
        if not cfg.stamps: return
        i = nst[0]; nst[0] += 1
        e(f"s_memrealtime s[{sSTAMP}:{sSTAMP+1}]\ns_memtime s[90:91]\ns_waitcnt lgkmcnt(0)\ns_mov_b32 s{72+i}, s{sSTAMP}\ns_mov_b32 s{80+i}, s90")
        e.q = []
    if cfg.stamps: e("s_memrealtime s[98:99]")
    e("s_cmp_ge_u32 s2, 256\ns_cbranch_scc1 LA_end")
    e("s_load_dwordx16 s[4:19], s[0:1], 0")
    e(f"v_lshrrev_b32 v1, 6, v0\nv_and_b32 v0, 63, v0\nv_readfirstlane_b32 s{sWAVE}, v1")
    if not cfg.nopf:
        e(f"s_getpc_b64 s[68:69]\nLA_pc:\ns_cmp_ge_u32 s{sWAVE}, 4\ns_cbranch_scc1 LA_nopf")
        e(f"""s_and_b32 s{sT0}, s2, 0xf8
s_add_u32 s{sT0}, s{sT0}, s{sWAVE}
s_lshl_b32 s{sT0}, s{sT0}, 7
s_min_u32 s{sT0}, s{sT0}, LA_endoftext-LA_pc-516
s_load_dword s3, s[68:69], s{sT0}
s_add_u32 s{sT0}, s{sT0}, 512
s_load_dword s3, s[68:69], s{sT0}""")
        e("LA_nopf:")
    e(f"""s_and_b32 s{sT0}, s2, 7
s_lshr_b32 s{sT1}, s2, 3
s_and_b32 s{sHALF}, s{sT1}, 1
s_lshr_b32 s{sT1}, s{sT1}, 1
s_lshr_b32 s{sT2}, s{sT1}, 2
s_and_b32 s{sT3}, s{sT1}, 3
s_lshr_b32 s{sB}, s{sT0}, 2
s_lshl_b32 s{sB}, s{sB}, 2
s_add_u32 s{sB}, s{sB}, s{sT2}
s_and_b32 s{sH}, s{sT0}, 3
s_lshl_b32 s{sH}, s{sH}, 2
s_add_u32 s{sH}, s{sH}, s{sT3}
s_lshl_b32 s{sROTO}, s{sT2}, 1
s_add_u32 s{sROTO}, s{sROTO}, s{sHALF}
s_lshl_b32 s{sG}, s{sB}, 1
s_add_u32 s{sG}, s{sG}, s{sHALF}""")
    R = cfg.rotq
    if R == 7:
        tb = [[(r + n) % 7 for n in range(7)] for r in range(7)]
        e(f"s_lshl_b32 s{sT0}, s{sT3}, 1\ns_add_u32 s{sT0}, s{sT0}, s{sROTO}\ns_sub_u32 s{sT1}, s{sT0}, 7\ns_cmp_ge_u32 s{sT0}, 7\ns_cselect_b32 s{sT0}, s{sT1}, s{sT0}")
    else:
        tb = []
        for r in range(R):
            o = []; base = 0
            while base < 7:
                w = min(R, 7 - base)
                o += [base + (r + n) % w for n in range(w)]; base += w
            tb.append(o)
        assert R in (1, 2, 4)
        e(f"s_add_u32 s{sT0}, s{sT3}, s{sROTO}\ns_and_b32 s{sT0}, s{sT0}, {R-1}")
    pk = [sum(c << (4*n) for n, c in enumerate(o)) for o in tb]
    e(f"s_mov_b32 s{sTBL}, {hex(pk[0])}")
    for r in range(1, len(pk)): e(f"s_cmp_eq_u32 s{sT0}, {r}\ns_cselect_b32 s{sTBL}, {hex(pk[r])}, s{sTBL}")
    e(f"s_cmp_eq_u32 s{sROTO}, 7\ns_cselect_b32 s{sROTO}, 0, s{sROTO}")
    def srds(lst):
        tab = {sX:(4,1605632), sWQ:(10,3670016), sK:(6,67108864), sV:(8,67108864), sWO:(12,3670016), sWS:(18,268435456), sOUT:(14,1605632)}
        for srd in lst:
            p, nb = tab[srd]
            e(f"s_mov_b32 s{srd}, s{p}\ns_mov_b32 s{srd+1}, s{p+1}\ns_mov_b32 s{srd+2}, {nb}\ns_mov_b32 s{srd+3}, 0x20000")
    e(f"s_mov_b32 s{sMODE}, 0\ns_cmp_lt_u32 s{sWAVE}, 4\ns_cbranch_scc1 LA_compute")

    if cfg.prio_h: e(f"s_setprio {cfg.prio_h}")
    vKV, vW, vXX, vO = 2, 3, 4, 5
    e(f"s_sub_u32 s{sWAVE}, s{sWAVE}, 4")
    e("LA_hrestart:")
    e(f"""v_lshrrev_b32 v8, 3, v0
v_mul_u32_u24 v{vXX}, {16*896}, v8
v_and_b32 v9, 7, v0
v_lshl_add_u32 v{vXX}, v9, 4, v{vXX}
v_cmp_eq_u32 vcc, 7, v8
v_mov_b32 v10, 0x70000000
v_lshrrev_b32 v6, 5, v0
v_cndmask_b32 v{vXX}, v{vXX}, v10, vcc
v_and_b32 v7, 31, v0
v_lshlrev_b32 v7, 4, v7
v_lshl_add_u32 v{vW}, v6, 15, v7""")
    e(f"""s_mul_i32 s{sLV}, s{sWAVE}, {4*ST}
s_lshl_b32 s{sWOFF}, s{sH}, 9
s_lshl_b32 s{sT0}, s{sWAVE}, 16
s_add_u32 s{sWOFF}, s{sWOFF}, s{sT0}
s_mul_i32 s{sXOFF}, s{sG}, 112
s_lshl_b32 s{sT0}, s{sWAVE}, 2
s_add_u32 s{sXOFF}, s{sXOFF}, s{sT0}
s_mul_i32 s{sXOFF}, s{sXOFF}, 896""")
    def dma(srd, voff, sreg, simm, mreg, mimm, nt=False):
        e(f"s_add_u32 m0, s{mreg}, {mimm}\ns_add_u32 s{sT0}, s{sreg}, {simm}\nbuffer_load_dwordx4 v{voff}, {sr(srd)}, s{sT0} offen {'nt ' if nt else ''}lds")
    def adv_ch():
        e(f"s_add_u32 s{sCH}, s{sCH}, 1\ns_cmp_eq_u32 s{sCH}, 7\ns_cselect_b32 s{sCH}, 0, s{sCH}")
    def koff(j): return j*1024 + 16*((j & 1) + 4*(j >> 1))
    def issue(n, kvbase=0):
        if n <= 6:
            sl = (n + 2) % 3
            e(f"s_bfe_u32 s{sCH}, s{sTBL}, {hex(0x30000 | (4*n))}")
            e(f"s_lshl_b32 s{sT1}, s{sCH}, 7\ns_add_u32 s{sT1}, s{sT1}, s{sXOFF}\ns_lshl_b32 s{sT2}, s{sCH}, 19\ns_add_u32 s{sT2}, s{sT2}, s{sWOFF}")
            for j in range(4): dma(sX, vXX, sT1, j*896, sLV, XBASE + sl*XT + j*ST)
            for a in range(2):
                for j in range(4): dma(sWQ, vW, sT2, (32*a + j)*8192, sLV, sl*PAIR + a*HALF + j*ST)
            return 12
        sl = (n + 1) % 4
        if n <= 39:
            i = n - 8; c = 0
            if cfg.nokv and n > 10: return 0
            if i + 1 <= 31:
                for j in range(4): dma(sK, vKV, sKVOFF, (i+1-kvbase)*16384 + j*512, sLV, sl*PAIR + koff(j), cfg.nt_kv)
                c += 4
            if i >= 0:
                for j in range(4): dma(sV, vKV, sKVOFF, (i-kvbase)*16384 + j*512, sLV, sl*PAIR + HALF + j*ST, cfg.nt_kv)
                c += 4
            return c
        if cfg.nowo: return 0
        e(f"s_lshl_b32 s{sT1}, s{sCH}, 7\ns_add_u32 s{sT1}, s{sT1}, s{sOOFF}")
        for j in range(8): dma(sWO, vO, sT1, j*8*896, sLO, sl*PAIR + (0 if sl % 2 else OBIAS) + j*1024)
        adv_ch()
        return 8
    assert 4*ST == 4096 + 128
    out = []
    def do_issue(n, kvbase=0): out.append((n, issue(n, kvbase)))
    def wait_step(n):
        while out and out[0][0] <= n: out.pop(0)
        e(f"s_waitcnt vmcnt({sum(c for _, c in out)})")
    e("s_waitcnt lgkmcnt(0)")
    srds([sX, sWQ])
    if cfg.hst: e("s_memrealtime s[82:83]")
    def parts(n):
        sv = e.L; e.L = []
        issue(n)
        L = e.L; e.L = sv
        r = []; cur = []
        for l in L:
            cur.append(l)
            if "buffer_load" in l: r.append(cur); cur = []
        return r
    p0, p1 = parts(0), None
    for x in p0: e.L += x
    if cfg.hst: e("s_memrealtime s[84:85]")
    srds([sK, sV, sWO, sWS, sOUT])
    p1 = parts(1)
    if cfg.half0:
        for x in p1[:4]: e.L += x
        e("s_waitcnt vmcnt(8)\ns_barrier")
        for x in p1[4:cfg.pre1]: e.L += x
    else:
        for x in p1[:cfg.pre1]: e.L += x
    e(f"s_waitcnt vmcnt({cfg.pre1})\ns_barrier")
    for x in p1[cfg.pre1:]: e.L += x
    out.append((1, 12))
    do_issue(2)
    e(f"""v_lshl_add_u32 v{vKV}, v6, 13, v7
v_mul_u32_u24 v{vO}, 896, v8
v_bfe_u32 v8, v0, 4, 2
v_lshlrev_b32 v8, 1, v8
v_xor_b32 v8, v8, v9
v_lshl_add_u32 v{vO}, v8, 4, v{vO}
s_lshl_b32 s{sLO}, s{sWAVE}, 13
s_lshl_b32 s{sKVOFF}, s{sB}, 4
s_add_u32 s{sKVOFF}, s{sKVOFF}, s{sH}
s_lshl_b32 s{sKVOFF}, s{sKVOFF}, 19
s_lshl_b32 s{sT0}, s{sWAVE}, 11
s_add_u32 s{sKVOFF}, s{sKVOFF}, s{sT0}
s_lshl_b32 s{sOOFF}, s{sH}, 8
s_lshl_b32 s{sT0}, s{sWAVE}, 6
s_add_u32 s{sOOFF}, s{sOOFF}, s{sT0}
s_mul_i32 s{sOOFF}, s{sOOFF}, 896""")
    sched = {1:[3],2:[4],3:[5],4:[6],5:[7],6:[8],7:[9,10]}
    for n in range(1, 8):
        wait_step(n); e("s_barrier")
        for s_ in sched.get(n, []): do_issue(s_)
    e(f"s_mov_b32 s{sCNT}, 7")
    e("LA_hloop:")
    entry = [c for _, c in out]
    for n in range(8, 12):
        wait_step(n); e("s_barrier"); do_issue(n+3)
    assert cfg.nokv or [c for _, c in out] == entry
    e(f"s_add_u32 s{sKVOFF}, s{sKVOFF}, {4*16384}\ns_sub_u32 s{sCNT}, s{sCNT}, 1\ns_cmp_lg_u32 s{sCNT}, 0\ns_cbranch_scc1 LA_hloop")
    out = [(s_ + 24, c) for s_, c in out]
    e(f"s_mov_b32 s{sCH}, s{sROTO}")
    e(f"s_lshl_b32 s{sT0}, s{sG}, 2\ns_load_dword s{sRDY}, s[16:17], s{sT0}")
    for n in range(36, cfg.lastbar + 1):
        if n == 40:
            e(f"s_waitcnt lgkmcnt(0)\ns_cmp_eq_u32 s{sRDY}, 0\ns_cbranch_scc1 LA_hn\nLA_hnret:")
        wait_step(n if n < cfg.lastbar else 46)
        e("s_barrier")
        if n == 41: e(f"v_mov_b32 v12, {LDS_FLAG}\nds_read_b128 v[16:19], v12")
        if n + 3 <= 46: do_issue(n+3, kvbase=28)
        if n == 41:
            e("s_waitcnt lgkmcnt(0)\nv_or3_b32 v16, v16, v17, v18\nv_or_b32 v16, v16, v19\nv_cmp_ne_u32 vcc, 0, v16\ns_cbranch_vccnz LA_hredo")
    e(f"s_cmp_ge_u32 s{sH}, {0 if cfg.noreduce else 14}\ns_cbranch_scc1 LA_end")
    hw = sT2
    sPB, sFB, sOB, sJ, sTO = sXOFF, sKVOFF, sOOFF, sCNT, sDELTA
    e(f"""s_lshr_b32 s{hw}, s{sH}, 2
s_lshl_b32 s{sPB}, s{sG}, 6
s_add_u32 s{sPB}, s{sPB}, s{hw}
s_mul_i32 s{sPB}, s{sPB}, {28*1024}
s_bfe_u32 s{sT0}, s{sH}, 0x10001
s_lshl_b32 s{sT0}, s{sT0}, 11
s_add_u32 s{sPB}, s{sPB}, s{sT0}
s_and_b32 s{sT0}, s{sH}, 1
s_lshl_b32 s{sT0}, s{sT0}, 7
s_add_u32 s{sPB}, s{sPB}, s{sT0}
s_mul_i32 s{sFB}, s{sG}, 28
s_add_u32 s{sFB}, s{sFB}, s{hw}
s_mul_i32 s{sFB}, s{sFB}, {cfg.fstride}
s_add_u32 s{sFB}, s{sFB}, {FLAGBASE}
s_mul_i32 s{sOB}, s{sG}, 112
s_lshl_b32 s{sT0}, s{sH}, 3
s_add_u32 s{sOB}, s{sOB}, s{sT0}
s_mul_i32 s{sOB}, s{sOB}, 896
s_mov_b32 s{sJ}, s{sWAVE}
v_lshrrev_b32 v8, 3, v0
v_and_b32 v9, 7, v0
v_lshlrev_b32 v2, 8, v8
v_lshl_add_u32 v2, v9, 4, v2
v_mul_u32_u24 v3, 896, v9
v_lshrrev_b32 v10, 5, v0
v_lshl_add_u32 v3, v10, 6, v3
v_and_b32 v8, 3, v8
v_lshl_add_u32 v3, v8, 3, v3
v_mov_b32 v4, 0""")
    e("LA_rloop:")
    e(f"""s_add_u32 s{sCH}, s{sROTO}, s{sJ}
s_sub_u32 s{sT0}, s{sCH}, 7
s_cmp_ge_u32 s{sCH}, 7
s_cselect_b32 s{sCH}, s{sT0}, s{sCH}
s_mul_i32 s{sT1}, s{sCH}, {4*cfg.fstride}
s_add_u32 s{sT1}, s{sT1}, s{sFB}
s_mov_b32 s{sTO}, 30000
s_mov_b64 exec, 1""")
    if cfg.stamps: e("s_memrealtime s[76:77]")
    e("LA_poll:")
    e(f"""v_mov_b32 v84, 0
s_sub_u32 s{sTO}, s{sTO}, 1
buffer_atomic_add v84, v4, {sr(sWS)}, s{sT1} offen sc0 sc1
s_waitcnt vmcnt(0)
v_cmp_ne_u32 vcc, 16, v84
s_cbranch_vccz LA_go
s_sleep {cfg.sleep}
s_cmp_lg_u32 s{sTO}, 0
s_cbranch_scc1 LA_poll""")
    e("LA_go:")
    e("s_mov_b64 exec, -1")
    if cfg.stamps: e("s_memrealtime s[78:79]")
    e(f"s_lshl_b32 s{sT0}, s{sCH}, 12\ns_add_u32 s{sT0}, s{sT0}, s{sPB}")
    for h in range(16):
        if cfg.rb < 16 and h and h % cfg.rb == 0:
            e(f"s_cmp_ge_u32 s{sJ}, 4\ns_cbranch_scc1 LA_rb{h}\ns_waitcnt vmcnt(0)\nLA_rb{h}:")
        e(f"buffer_load_dwordx4 {vr(16+4*h,4)}, v2, {sr(sWS)}, s{sT0} offen {cfg.ld_flags}")
        if h < 15: e(f"s_add_u32 s{sT0}, s{sT0}, {4*28*1024}")
    for h in range(16):
        e(f"s_waitcnt vmcnt({15-h})")
        for k in range(4):
            r = 16 + 4*h + k
            if h == 0:
                e(f"v_lshlrev_b32 v{8+2*k}, 16, v{r}\nv_and_b32 v{9+2*k}, 0xffff0000, v{r}")
            else:
                e(f"v_lshlrev_b32 v5, 16, v{r}\nv_and_b32 v6, 0xffff0000, v{r}\nv_add_f32 v{8+2*k}, v{8+2*k}, v5\nv_add_f32 v{9+2*k}, v{9+2*k}, v6")
    if cfg.stamps: e("s_memrealtime s[80:81]")
    for k in range(4): e(f"v_cvt_pk_bf16_f32 v{80+k}, v{8+2*k}, v{9+2*k}")
    e(f"s_lshl_b32 s{sT0}, s{sCH}, 7\ns_add_u32 s{sT0}, s{sT0}, s{sOB}")
    e(f"buffer_store_dwordx2 v[80:81], v3, {sr(sOUT)}, s{sT0} offen {cfg.out_flags}")
    e(f"buffer_store_dwordx2 v[82:83], v3, {sr(sOUT)}, s{sT0} offen offset:32 {cfg.out_flags}")
    e(f"s_add_u32 s{sJ}, s{sJ}, 4\ns_cmp_lt_u32 s{sJ}, 7\ns_cbranch_scc1 LA_rloop")
    if cfg.stamps:
        e(f"s_waitcnt vmcnt(0) lgkmcnt(0)")
        e(f"v_mov_b32 v0, s76\nv_mov_b32 v1, s78\nv_mov_b32 v2, s{sTO}\nv_mov_b32 v3, s80\nv_mov_b32 v8, 0")
        if cfg.hst: e("v_mov_b32 v0, s82\nv_mov_b32 v1, s84\nv_mov_b32 v2, s86\nv_mov_b32 v3, s88")
        e(f"s_lshl_b32 s{sT0}, s2, 2\ns_add_u32 s{sT0}, s{sT0}, s{sWAVE}\ns_lshl_b32 s{sT0}, s{sT0}, 4\ns_add_u32 s{sT0}, s{sT0}, 0x8100000\ns_mov_b64 exec, 1")
        e(f"buffer_store_dwordx4 v[0:3], v8, {sr(sWS)}, s{sT0} offen")
    e("LA_end:\ns_endpgm")
    e("LA_hredo:\ns_waitcnt vmcnt(0)\ns_barrier\ns_branch LA_hrestart")
    e("LA_hn:")
    e(f"s_lshl_b32 s{sT0}, s{sG}, 2\nv_mov_b32 v12, s{sT0}\ns_mov_b32 s{sT1}, 30000")
    e("LA_hn1:")
    e(f"""global_load_dword v13, v12, s[16:17] sc0 sc1
s_sub_u32 s{sT1}, s{sT1}, 1
s_waitcnt vmcnt(0)
v_cmp_eq_u32 vcc, 0, v13
s_cbranch_vccz LA_hnret
s_cmp_lg_u32 s{sT1}, 0
s_cbranch_scc1 LA_hn1
s_branch LA_hnret""")

    e(".p2align 6\nLA_compute:")
    if cfg.prio_c: e(f"s_setprio {cfg.prio_c}")
    stamp()
    e("LA_crestart:")
    t = SA
    ln = vT3
    e(f"v_mbcnt_lo_u32_b32 v{ln}, -1, 0\nv_mbcnt_hi_u32_b32 v{ln}, -1, v{ln}\ns_mov_b32 s{sC}, {hex(f2u(C_SCALE))}")
    e(f"""v_lshrrev_b32 v{t}, 4, v{ln}
v_and_b32 v{t+1}, 15, v{ln}
v_lshrrev_b32 v{t+2}, 2, v{ln}
v_and_b32 v{t+3}, 3, v{ln}
v_mul_u32_u24 v{vT0}, {ST}, v{t+2}
v_lshl_add_u32 v{vT0}, v{t+3}, 3, v{vT0}
v_add_u32 v{vAV}, {2*PAIR}, v{vT0}
v_mul_u32_u24 v{vAK}, {ST}, v{t+1}
v_lshl_add_u32 v{vAK}, v{t}, 4, v{vAK}
s_lshl_b32 s{sT0}, s{sWAVE}, 8
s_add_u32 s{sT0}, s{sT0}, {XBASE + 2*XT}
v_add_u32 v{vAK}, s{sT0}, v{vAK}
v_lshrrev_b32 v{t+4}, 1, v{t+1}
v_and_b32 v{t+5}, 1, v{ln}
v_lshl_add_u32 v{t+4}, v{t+4}, 2, v{t+5}
v_bfe_u32 v{t+5}, v{ln}, 4, 1
v_lshl_add_u32 v{t+4}, v{t+5}, 1, v{t+4}
v_lshrrev_b32 v{t+5}, 5, v{ln}
v_add_u32 v{t+4}, v{t+4}, v{t+5}
v_lshlrev_b32 v{vT1}, 10, v{t+1}
v_lshl_add_u32 v{vT1}, v{t+4}, 4, v{vT1}""")
    e("s_waitcnt lgkmcnt(0)")
    srds([sWS])
    e(f"s_or_b32 s{sT0}, s{sWAVE}, s{sH}\ns_or_b32 s{sT0}, s{sT0}, s{sMODE}\ns_cmp_lg_u32 s{sT0}, 0\ns_cbranch_scc1 LA_noinit")
    e(f"s_mul_i32 s{sT0}, s{sG}, {28*cfg.fstride}\ns_add_u32 s{sT0}, s{sT0}, {FLAGBASE}")
    e(f"v_mul_u32_u24 v{Q0}, {cfg.fstride}, v{ln}\nv_mov_b32 v{Q0+1}, 0\ns_mov_b64 exec, 0xfffffff")
    e(f"buffer_store_dword v{Q0+1}, v{Q0}, {sr(sWS)}, s{sT0} offen sc0 sc1\ns_mov_b64 exec, -1")
    e("LA_noinit:")
    for i in range(0, 128, 2): e(f"v_mov_b64 {vr(i,2)}, 0")
    e(f"v_mov_b64 {vr(vL,2)}, 0")
    e(f"s_mov_b32 s{sCNT}, 6\ns_mov_b32 s{sIDX}, 2")
    if cfg.w3: e(f"s_cmp_eq_u32 s{sWAVE}, 3\ns_cbranch_scc1 LA_c1")
    nst0 = nst[0]

    def compute(nq):
        global vAO
        sfx = str(nq)
        nst[0] = nst0
        e.q = []
        P32 = Plan(32, 6, FB6); P16 = Plan(16, 6, FB6)
        PQ = Plan(32, 8, FB6 + [SA, SA+4])
        PO = Plan(32, 8, FB6 + [72, 76])
        if cfg.half0: e(f"s_branch LA_b0{sfx}\nLA_hb{sfx}:\ns_barrier\ns_branch LA_nh{sfx}\nLA_b0{sfx}:")
        e("s_barrier")
        stamp()
        qp = u_qp(nq)
        def xload(i): return (f"ds_read_b128 {vr(SB+4*i,4)}, v{vAK} offset:{(i & 1)*128 + (i >> 1)*64}", f"x{i}")
        x0 = [xload(i) for i in range(nq)]; x1 = [xload(2+i) for i in range(nq)]
        for it in x0: e.ds(*it)
        for mm in range(PQ.pre):
            for ld in qp[mm].loads: e.ds(ld(PQ.reg(mm)), ("qp", mm))
        e.wait({("qp", 0)})
        ent = list(e.q)
        e(f".p2align 3\nLA_qp{sfx}:")
        scal = [20, f"s_add_u32 s{sIDX}, s{sIDX}, 1", f"s_cmp_eq_u32 s{sIDX}, 3", f"s_cselect_b32 s{sIDX}, 0, s{sIDX}", f"s_cselect_b32 s{sDELTA}, -2, 1",
                f"s_mul_i32 s{sD2}, s{sDELTA}, {XT}", f"s_mul_i32 s{sDELTA}, s{sDELTA}, {PAIR}", f"s_sub_u32 s{sCNT}, s{sCNT}, 1", f"s_cmp_lg_u32 s{sCNT}, 0"]
        fx = {6: [x1[0]], 49: [f"v_add_u32 v{vAV}, s{sDELTA}, v{vAV}", f"v_add_u32 v{vAK}, s{sD2}, v{vAK}"]}
        if nq == 2: fx[10] = [x1[1]]
        if cfg.half0:
            fx[16] = [f"s_cmp_eq_u32 s{sCNT}, 6"]
            fx[18] = [f"s_cbranch_scc1 LA_hb{sfx}", f"LA_nh{sfx}:"]
        sv = list(e.L)
        _, bar = emit_block(e, cfg, "qp", qp, PQ, qp, PQ, "qpn", fixed=fx, post=x0, scal=scal)
        assert bar == 51, bar
        rename(e, "qpn", "qp"); steady = list(e.q)
        assert steady == ent[len(ent)-len(steady):] , (steady, ent)
        e.L, e.q = sv, list(ent)
        emit_block(e, cfg, "qp", qp, PQ, qp, PQ, "qpn", fixed=fx, post=x0, scal=scal)
        rename(e, "qpn", "qp"); assert e.q == steady
        e(f"s_cbranch_scc1 LA_qp{sfx}")
        allu = {(a, dt): qp[a*16+dt] for a in range(2) for dt in range(16)}
        order = [(0, dt) for dt in range(6)]
        for dt in range(16):
            order.append((1, dt))
            if dt + 6 < 16: order.append((0, dt+6))
        ql = [allu[k] for k in order]
        fin = {dt: order.index((1, dt)) for dt in range(16)}
        def qconv(ks, pk=False):
            ops = []
            for qt in range(nq):
                b = oreg(qt, 2*ks); q = qreg(qt, ks)
                if pk: ops += [f"v_pk_mul_f32 {vr(b+k,2)}, {vr(b+k,2)}, {sr(sC,2)} op_sel_hi:[1,0]" for k in range(0, 8, 2)]
                else: ops += [f"v_mul_f32 v{b+k}, s{sC}, v{b+k}" for k in range(8)]
                ops += [f"v_cvt_pk_bf16_f32 v{q+k}, v{b+2*k}, v{b+2*k+1}" for k in range(4)]
            return ops
        def qswap(ks):
            return [f"v_permlane16_swap_b32 v{qreg(qt,ks)+k}, v{qreg(qt,ks)+k+2}" for qt in range(nq) for k in range(2)]
        dly = 6 if nq == 2 else 10
        NA = cfg.convA if nq == 2 else 4
        NC = cfg.convC if nq == 2 else 3
        st = []
        for ks in range(NA):
            st += [(op, 2*fin[2*ks+1] + dly) for op in qconv(ks)]
            if ks: st += [(op, 0) for op in qswap(ks-1)]
        fx = {2: [x1[0]], 49: [f"v_mov_b32 v{vAK}, v{vT1}", f"v_mov_b32 v{vAV}, v{vT0}"]}
        if nq == 2: fx[4] = [x1[1]]
        qk0 = u_qk(SA + 0, 0, nq, ksmajor=True)
        lo, _ = emit_block(e, cfg, "qp", ql, PQ, qk0, P16, "qk0", fixed=fx, streams=[st])
        if cfg.stamps: stamp()
        if nq == 2:
            e(f"s_or_b32 s{sT0}, s{sWAVE}, s{sH}\ns_cmp_lg_u32 s{sT0}, 0\ns_cbranch_scc1 LA_noinit2")
            e(f"s_lshl_b32 s{sT0}, s{sG}, 2\nv_mov_b32 v{vT2}, s{sT0}\nv_mov_b32 v{vT3}, 1\ns_mov_b64 exec, 1\ns_waitcnt vmcnt(0)")
            e(f"global_store_dword v{vT2}, v{vT3}, s[16:17] sc0 sc1\ns_mov_b64 exec, -1")
            e("LA_noinit2:")
        for op, _ in lo[0]: e(op)
        if nq == 1: e("s_nop 3")
        for ks in range(NA, 8):
            ops = qconv(ks, pk=True)
            if ks >= 8 - NC: ops = [o for o in ops if "pk_mul" in o]
            for op in ops: e(op)
            if ks < 8 - NC or ks == 8 - NC:
                for op in qswap(ks-1): e(op)
        st = []
        for ks in range(8 - NC, 8):
            st += [(o, 0) for o in qconv(ks) if "cvt" in o]
            st += [("s_nop 0", 0)] * (1 if nq == 2 else 2) + [(o, 0) for o in qswap(ks)]
        e("s_nop 1")
        st8 = u_qk(SB, PAIR, nq) + u_pv(SA, PAIR, nq, first=True)
        lo, _ = emit_block(e, cfg, "qk0", qk0, P16, st8, P32, "m", streams=[st])
        assert not lo[0]
        pvl = u_pv(SB, 0, nq)
        t = SA
        q_att = list(e.q)
        def attention(tag):
            el = elems(nq)
            st = []
            for k in range(17):
                if k < 16: st += [(o, 4 if nq == 2 else 8) for o in sm_exp(SA, el[k])]
                if k: st += [(o, 0) for o in sm_post(SA, el[k-1])]
            pre = st[:0]
            fx = {}; sm_tail(fx, SB, nq)
            g = 4 if nq == 2 else 8
            per = (len(st) + (29 - g)) // (30 - g)
            for k in range(0, len(st), per):
                fx[g] = [o for o, _ in st[k:k+per]] + fx.get(g, []); g += 1
            assert g <= 30
            fx.setdefault(53, []).extend([f"v_add_u32 v{vAK}, {2*PAIR}, v{vAK}", f"v_add_u32 v{vAV}, {2*PAIR}, v{vAV}"])
            lA = u_qk(SA, 0, nq) + u_pv(SB, 0, nq)
            lB = u_qk(SB, PAIR, nq) + u_pv(SA, PAIR, nq)
            emit_block(e, cfg, "m", st8, P32, lA, P32, "mA", fixed=fx, scal=[40, f"s_mov_b32 s{sCNT}, 15", f"s_mov_b32 s{sDELTA}, {(-2*PAIR) & 0xffffffff}"])
            q_entry = list(e.q)
            e(f".p2align 3\nLA_main{sfx}{tag}:")
            fx = {}; sm_head(fx, SB, nq); sm_tail(fx, SA, nq)
            emit_block(e, cfg, "mA", lA, P32, lB, P32, "mB", fixed=fx)
            fx = {}; sm_head(fx, SA, nq); sm_tail(fx, SB, nq)
            fx.setdefault(53, []).extend([f"v_add_u32 v{vAK}, s{sDELTA}, v{vAK}", f"v_add_u32 v{vAV}, s{sDELTA}, v{vAV}"])
            emit_block(e, cfg, "mB", lB, P32, lA, P32, "mA", fixed=fx,
                       scal=[56, f"s_sub_u32 s{sDELTA}, 0, s{sDELTA}", f"s_sub_u32 s{sCNT}, s{sCNT}, 1", f"s_cmp_lg_u32 s{sCNT}, 0"])
            assert e.q == q_entry, (e.q, q_entry)
            e(f"s_cbranch_scc1 LA_main{sfx}{tag}")
            if not tag: stamp()
            else: e.q = [] if cfg.stamps else e.q
            if tag and cfg.stamps: e('s_waitcnt lgkmcnt(0)')
            rename(e, "mA", "junk")
            pvl = u_pv(SB, 0, nq)
            for mm in range(5):
                for ld in pvl[mm].loads: e.ds(ld(P16.reg(mm)), ("pvl", mm))
            hl = sm_head_list(SB, nq)
            ex = [o for k_, ops in enumerate(hl) for o in ops if k_ % 2 == 0]; ot = [o for k_, ops in enumerate(hl) for o in ops if k_ % 2 == 1]
            for o in ex: e(o)
            t = SA
            e(f"v_mbcnt_lo_u32_b32 v{t+2}, -1, 0")
            for o in ot: e(o)
        e(f"s_cmp_lg_u32 s{sMODE}, 0\ns_cbranch_scc1 LA_gen{sfx}")
        attention("")
        q_join = list(e.q)
        e(f"LA_join{sfx}:")
        e(f"v_mbcnt_hi_u32_b32 v{t+2}, -1, v{t+2}\nv_lshrrev_b32 v{t+3}, 2, v{t+2}")
        misc = f"""v_lshlrev_b32 v{t+3}, 7, v{t+3}
v_bfe_u32 v{t+4}, v{t+2}, 3, 2
v_lshl_add_u32 v{t+3}, v{t+4}, 5, v{t+3}
v_and_b32 v{t+4}, 3, v{t+2}
v_lshl_add_u32 v{t+3}, v{t+4}, 3, v{t+3}
v_add_u32 v{vT0}, {OBIAS}, v{t+3}
v_xor_b32 v{vT1}, 32, v{vT0}
v_xor_b32 v{vT2}, 64, v{vT0}
v_xor_b32 v{vT3}, 0x60, v{vT0}""".split("\n")
        def ocvt(ks): return [f"v_cvt_pk_bf16_f32 v{qreg(qt,ks)+k}, v{oreg(qt,2*ks)+2*k}, v{oreg(qt,2*ks)+2*k+1}" for qt in range(nq) for k in range(4)]
        st = [(o, 0) for o in misc] + [(o, 2*(2*ks+1) + dly) for ks in range(8) for o in ocvt(ks)]
        vAO = vT0
        op0 = u_op(ACC0, 32768, nq)
        lo, _ = emit_block(e, cfg, "pvl", pvl, P16, op0, PO, "o0", streams=[st])
        stamp()
        sFL = sD2; sCHF = sIDX
        opA = u_op(ACC1, 0, nq); opB = u_op(ACC0, 32768, nq)
        sal = f"""s_lshl_b32 s{sT1}, s{sG}, 2
s_lshl_b32 s{sT0}, s{sG}, 4
s_add_u32 s{sT0}, s{sT0}, s{sH}
s_lshl_b32 s{sT0}, s{sT0}, 2
s_add_u32 s{sT0}, s{sT0}, s{sWAVE}
s_mul_i32 s{sSTB}, s{sT0}, {28*1024}
s_mov_b32 s{sCH}, s{sROTO}
s_mul_i32 s{sFL}, s{sG}, 28
s_add_u32 s{sFL}, s{sFL}, s{sWAVE}
s_mul_i32 s{sFL}, s{sFL}, {cfg.fstride}
s_add_u32 s{sFL}, s{sFL}, {FLAGBASE}
s_mov_b32 s{sCHF}, s{sROTO}
s_mov_b32 s{sCNT}, 3
s_mov_b32 s{sDELTA}, {(-2*PAIR) & 0xffffffff}""".split("\n")
        a, b2 = 64, 65
        lo_t, hi_t = hex(f2u(2.0**-cfg.T)), hex(f2u(2.0**cfg.T))
        lred = f"""v_mov_b32 v{a}, v{vL}
v_mov_b32 v{b2}, v{vL+1}
v_mbcnt_lo_u32_b32 v{vSO}, -1, 0
v_mbcnt_hi_u32_b32 v{vSO}, -1, v{vSO}
v_permlane32_swap_b32 v{a}, v{vL}
v_permlane32_swap_b32 v{b2}, v{vL+1}
v_add_f32 v{vL}, v{vL}, v{a}
v_add_f32 v{vL+1}, v{vL+1}, v{b2}
v_mov_b32 v{a}, v{vL}
v_mov_b32 v{b2}, v{vL+1}
v_mov_b32 v{vONE}, {hi_t}
v_mov_b32 v{vRD}, s{sT1}
v_permlane16_swap_b32 v{a}, v{vL}
v_permlane16_swap_b32 v{b2}, v{vL+1}
v_add_f32 v{vL}, v{vL}, v{a}
v_add_f32 v{vL+1}, v{vL+1}, v{b2}""".split("\n")
        if nq == 1: lred = [o for o in lred if f"v{b2}" not in o.replace(f"v{b2}0", "")] ; lred.insert(3, "s_nop 0"); lred.insert(9, "s_nop 0")
        chk = [f"v_med3_f32 v{a}, v{vL}, s{sT2}, v{vONE}", f"v_cmp_neq_f32 vcc, v{a}, v{vL}"]
        if nq == 2: chk = [chk[0], f"v_med3_f32 v{b2}, v{vL+1}, s{sT2}, v{vONE}", chk[1], f"v_cmp_neq_f32 s[{sLK}:{sLK+1}], v{b2}, v{vL+1}"]
        late = f"""v_min_u32 v{vFOFF}, 1, v{vSO}
v_mul_u32_u24 v{vFOFF}, 0x700000, v{vFOFF}
v_lshlrev_b32 v{vFOFF}, 8, v{vFOFF}
v_lshlrev_b32 v{vSO}, 4, v{vSO}
v_mov_b32 v{vONE}, 1
v_rcp_f32 v{vL}, v{vL}
v_rcp_f32 v{vL+1}, v{vL+1}""".split("\n")
        adr = lambda d: [f"v_add_u32 v{vAO+i}, {d}, v{vAO+i}" for i in range(4)]
        rem = [(o, 3 if nq == 2 else 6) for o, _ in lo[0]]
        fx = {49: adr(2*PAIR)[:2], 50: adr(2*PAIR)[2:]}
        extra = lred + chk
        dec = ([f"s_or_b64 vcc, vcc, s[{sLK}:{sLK+1}]"] if nq == 2 else []) + [f"s_cmp_lg_u64 vcc, 0", f"s_cselect_b32 s{sT3}, 1, {1 if cfg.force else 0}",
               f"s_cmp_eq_u32 s{sMODE}, 0", f"s_cselect_b32 s{sT3}, s{sT3}, s{sMODE}", f"s_and_b32 s{sT3}, s{sT3}, 1"]
        sal2 = [f"s_lshl_b32 s{sT1}, s{sWAVE}, 2", f"s_add_u32 s{sT1}, s{sT1}, {LDS_FLAG}", f"s_mov_b32 s{sT2}, {lo_t}"] + sal[1:]
        for k_, o in enumerate(dec): fx[34 + 2*k_] = [o]
        fx[46] = fx.get(46, []) + [f"v_mov_b32 v{a}, s{sT3}"]
        fx[48] = [(f"ds_write_b32 v{vRD}, v{a}", "fw"), f"v_mov_b32 v{b2}, {LDS_FLAG}"]
        lo, bar = emit_block(e, cfg, "o0", op0, PO, opA, PO, "oA", fixed=fx, streams=[rem + [(o, 52) for o in late]], scal=[0] + sal2,
                             force={8 + k_: [o] for k_, o in enumerate(extra)}, post=[(f"ds_read_b128 v[80:83], v{b2}", "fr")])
        assert bar == 51 and cfg.formal
        for o, _ in lo[0]:
            assert "cvt" not in o
            e(o)
        assert "fr" not in e.q
        e(f"v_or3_b32 v80, v80, v81, v82\nv_or_b32 v80, v80, v83\nv_cmp_ne_u32 vcc, 0, v80\ns_cbranch_vccnz LA_redo{sfx}")
        q_entry = list(e.q)
        nstore = 2*nq
        def flag_sal(first=False):
            if first:
                return [f"s_mul_i32 s{sT1}, s{sCHF}, {4*cfg.fstride}", f"s_add_u32 s{sT1}, s{sT1}, s{sFL}", f"s_add_u32 s{sT2}, s{sCHF}, 1",
                        f"s_cmp_eq_u32 s{sT2}, 7", f"s_cselect_b32 s{sT2}, 0, s{sT2}", f"s_cmp_eq_u32 s{sCNT}, 3",
                        f"s_cselect_b32 s{sT1}, 0x7ff00000, s{sT1}", f"s_cselect_b32 s{sCHF}, s{sCHF}, s{sT2}"]
            return [f"s_mul_i32 s{sT1}, s{sCHF}, {4*cfg.fstride}", f"s_add_u32 s{sT1}, s{sT1}, s{sFL}", f"s_add_u32 s{sCHF}, s{sCHF}, 1",
                    f"s_cmp_eq_u32 s{sCHF}, 7", f"s_cselect_b32 s{sCHF}, 0, s{sCHF}"]
        def flag_op(cnt): return [f"s_waitcnt vmcnt({20 if cfg.nowait else cnt})", f"buffer_atomic_add v{vONE}, v{vFOFF}, {sr(sWS)}, s{sT1} offen sc1"]
        def store_sal():
            return [f"s_lshl_b32 s{sT0}, s{sCH}, 12", f"s_add_u32 s{sT0}, s{sT0}, s{sSTB}", f"s_add_u32 s{sCH}, s{sCH}, 1",
                    f"s_cmp_eq_u32 s{sCH}, 7", f"s_cselect_b32 s{sCH}, 0, s{sCH}"]
        def store_ops(acc, S, pk=False):
            ops = []
            for p in range(nstore):
                b = acc + 8*p
                if pk: ops += [f"v_pk_mul_f32 {vr(b+k,2)}, {vr(b+k,2)}, {vr(vL,2)} op_sel:[0,{p//2}] op_sel_hi:[1,{p//2}]" for k in range(0, 8, 2)]
                else: ops += [f"v_mul_f32 v{b+k}, v{vL+p//2}, v{b+k}" for k in range(8)]
                ops += [f"v_cvt_pk_bf16_f32 v{S+4*p+k}, v{b+2*k}, v{b+2*k+1}" for k in range(4)]
                if not cfg.nostore: ops += [f"buffer_store_dwordx4 {vr(S+4*p,4)}, v{vSO}, {sr(sWS)}, s{sT0} offen offset:{p*1024} {cfg.st_flags}"]
            return ops
        e(f".p2align 3\nLA_op{sfx}:")
        g0 = 0 if nq == 2 else 2
        lo, _ = emit_block(e, cfg, "oA", opA, PO, opB, PO, "oB", fixed={62: flag_op(nstore+1)}, streams=[[(o, g0) for o in store_ops(ACC0, STG0)]],
                   scal=[0] + store_sal() + flag_sal(True), barrier=(f"s_cmp_lt_u32 s{sCNT}, {2 if cfg.lastbar < 46 else 1}", f"LA_nb1{sfx}"))
        assert not lo[0]
        fx = {49: adr(f"s{sDELTA}")[:2], 50: adr(f"s{sDELTA}")[2:], 62: flag_op(nstore+1),
              54: [f"s_sub_u32 s{sDELTA}, 0, s{sDELTA}"], 56: [f"s_sub_u32 s{sCNT}, s{sCNT}, 1"], 58: [f"s_cmp_lg_u32 s{sCNT}, 0"]}
        lo, _ = emit_block(e, cfg, "oB", opB, PO, opA, PO, "oA", fixed=fx, streams=[[(o, g0) for o in store_ops(ACC1, STG1)]],
                   scal=[0] + store_sal() + flag_sal(), barrier=(f"s_cmp_lt_u32 s{sCNT}, {3 if cfg.lastbar < 45 else 2}", f"LA_nb2{sfx}"))
        assert not lo[0]
        assert e.q == q_entry
        e(f"s_cbranch_scc1 LA_op{sfx}")
        for o in store_sal() + store_ops(ACC0, STG0, pk=True) + flag_sal() + flag_op(nstore+1) + flag_sal() + flag_op(1): e(o)
        if cfg.stamps:
            stamp()
            e("s_waitcnt vmcnt(0)")
            stamp()
            n = nst[0]
            for i in range(16): e(f"v_mov_b32 v{i}, s{72+i}" if (i % 8) < n else f"v_mov_b32 v{i}, 0")
            e("v_mov_b32 v7, s98")
            e(f"s_lshl_b32 s{sT0}, s2, 3\ns_add_u32 s{sT0}, s{sT0}, s{sWAVE}\ns_lshl_b32 s{sT0}, s{sT0}, 6\ns_add_u32 s{sT0}, s{sT0}, 0x8000000")
            e(f"v_mov_b32 v16, 0\ns_mov_b64 exec, 1")
            for i in range(4): e(f"buffer_store_dwordx4 v[{4*i}:{4*i+3}], v16, {sr(sWS)}, s{sT0} offen offset:{16*i}")
        e("s_endpgm")
        cold.append((nq, attention, q_att, q_join))
    cold = []
    compute(2)
    if cfg.w3:
        e(".p2align 6\nLA_c1:")
        compute(1)
    e("LA_endoftext:")
    for nq, attention, q_att, q_join in cold:
        sfx = str(nq)
        e(f"LA_redo{sfx}:\ns_waitcnt lgkmcnt(0)\ns_barrier\ns_add_u32 s{sMODE}, s{sMODE}, 1\ns_branch LA_crestart")
        e(f"LA_gen{sfx}:")
        e(f"""v_mbcnt_lo_u32_b32 v{vMX}, -1, 0
v_mbcnt_hi_u32_b32 v{vMX}, -1, v{vMX}
s_lshl_b32 s{sT0}, s{sWAVE}, 9
s_add_u32 s{sT0}, s{sT0}, {LDS_NEG}
v_lshl_add_u32 v{vMX}, v{vMX}, 3, s{sT0}
ds_read_b64 {vr(vNEG,2)}, v{vMX}
s_waitcnt lgkmcnt(0)
v_mov_b32 v{vMX}, 0xff800000
v_mov_b32 v{vMX+1}, 0xff800000
s_cmp_eq_u32 s{sMODE}, 2
s_cbranch_scc1 LA_gen2{sfx}
v_mov_b64 {vr(vNEG,2)}, 0""")
        e(f"LA_gen2{sfx}:")
        e.q = list(q_att)
        GEN[0] = True
        attention("g")
        GEN[0] = False
        assert e.q == q_join
        t = SA + 8
        e(f"""v_mov_b32 v{t}, v{vMX}
v_mov_b32 v{t+1}, v{vMX+1}
s_nop 1
v_permlane32_swap_b32 v{t}, v{vMX}
v_permlane32_swap_b32 v{t+1}, v{vMX+1}
v_max_f32 v{vMX}, v{vMX}, v{t}
v_max_f32 v{vMX+1}, v{vMX+1}, v{t+1}
v_mov_b32 v{t}, v{vMX}
v_mov_b32 v{t+1}, v{vMX+1}
s_nop 1
v_permlane16_swap_b32 v{t}, v{vMX}
v_permlane16_swap_b32 v{t+1}, v{vMX+1}
v_max_f32 v{vMX}, v{vMX}, v{t}
v_max_f32 v{vMX+1}, v{vMX+1}, v{t+1}
v_sub_f32 v{vMX}, 0, v{vMX}
v_sub_f32 v{vMX+1}, 0, v{vMX+1}
v_mbcnt_hi_u32_b32 v{t}, -1, v{SA+2}
s_lshl_b32 s{sT0}, s{sWAVE}, 9
s_add_u32 s{sT0}, s{sT0}, {LDS_NEG}
v_lshl_add_u32 v{t}, v{t}, 3, s{sT0}
ds_write_b64 v{t}, {vr(vMX,2)}
s_waitcnt lgkmcnt(0)
s_branch LA_join{sfx}""")
    kd = f""".amdhsa_kernel {KA}
  .amdhsa_next_free_vgpr 256
  .amdhsa_next_free_sgpr 100
  .amdhsa_accum_offset 256
  .amdhsa_group_segment_fixed_size 0
  .amdhsa_kernarg_size 64
  .amdhsa_user_sgpr_count 2
  .amdhsa_user_sgpr_kernarg_segment_ptr 1
  .amdhsa_system_sgpr_workgroup_id_x 1
.end_amdhsa_kernel
"""
    return hdr + "\n" + "\n".join(e.L) + '\n.section .rodata,"a"\n.p2align 6\n' + kd

if __name__ == "__main__":
    cfg = Cfg()
    for a in sys.argv[2:]:
        k, v = a.split("=")
        cur = getattr(cfg, k)
        setattr(cfg, k, type(cur)(eval(v)) if not isinstance(cur, str) else v.replace("+", " "))
    open(sys.argv[1], "w").write(gen(cfg))
```

```python
import sys, math, struct

def f2u(x): return struct.unpack("<I", struct.pack("<f", x))[0]

class Cfg:
    nt_kv = True
    st_flags = "sc0 sc1"
    ld_flags = "sc0 sc1"
    out_flags = ""
    stamps = False
    prio_c = 3
    prio_h = 0
    formal = True
    fstride = 4352
    sleep = 8
    flag_unit = 30
    rotq = 2
    w3 = True
    nokv = False
    nowait = False
    noreduce = False
    T = 30
    force = False
    convA = 2
    convC = 3
    rb = 16
    nostore = False
    early_rd = True

ST = 1056; HALF = 16896; PAIR = 33792
XBASE = 3 * PAIR; XT = HALF
OBIAS = PAIR - 32768
LDS_BYTES = 163840
C_SCALE = math.log2(math.e) / 16.0
FLAGBASE = 0x2000000
LDS_FLAG = 152064
LDS_NEG = 152320
sMODE = 97; sRDY = 49
vNEG = 252; vMX = 254

O0 = 0; Q0 = 128; SA = 192; SB = 208; F0 = 224
vAK = 248; vAV = 249; vL = 250
vT0 = 252; vT1 = 253; vT2 = 254; vT3 = 255
ACC0 = 192; ACC1 = 0; STG0 = 32; STG1 = 48
vAO = 64
vSO = 68; vFOFF = 69; vONE = 70; vRD = 71
sX, sK, sV, sWQ, sWO, sWS, sOUT = 20, 24, 28, 32, 36, 40, 92
sWAVE, sB, sH, sHALF, sTBL = 44, 45, 46, 47, 48
sC = 68
sT0, sT1, sT2, sT3 = 50, 51, 52, 53
sCNT = 54; sDELTA = 55; sIDX = 56; sD2 = 57; sSTB = 58; sCH = 59
sLK, sLV, sLO = 60, 61, 62
sWOFF, sXOFF, sKVOFF, sOOFF = 63, 64, 65, 66
sROTO = 67; sG = 96
sSTAMP = 70

def vr(a, n): return f"v[{a}:{a+n-1}]"
def sr(a, n=4): return f"s[{a}:{a+n-1}]"

class Em:
    def __init__(self):
        self.L = []; self.q = []
    def __call__(self, s):
        for l in s.split("\n"):
            self.L.append("    " + l if not l.endswith(":") else l)
    def ds(self, s, tag):
        self(s); self.q.append(tag)
    def wait(self, tags):
        idx = -1
        for i, t in enumerate(self.q):
            if t in tags: idx = i
        if idx < 0: return False
        nn = min(len(self.q) - 1 - idx, 15)
        self(f"s_waitcnt lgkmcnt({nn})")
        self.q = self.q[len(self.q)-nn:] if nn else []
        return True
    def waitall(self):
        self("s_waitcnt lgkmcnt(0)"); self.q = []

class U:
    def __init__(self, mf, loads, extra=()):
        self.mf, self.loads, self.extra = mf, loads, tuple(extra)

def kload(off): return [lambda f, o=off: f"ds_read_b128 {vr(f,4)}, v{vAK} offset:{o}"]
def trload(a, o0, o1):
    return [lambda f, o=o0: f"ds_read_b64_tr_b16 {vr(f,2)}, v{a} offset:{o}",
            lambda f, o=o1: f"ds_read_b64_tr_b16 {vr(f+2,2)}, v{a} offset:{o}"]
def oreg(qt, dt): return O0 + 64*qt + 4*dt
def qreg(qt, ks): return Q0 + 32*qt + 4*ks

def u_qk(Y, base, nq, ksmajor=False):
    order = [(kt, ks) for ks in range(8) for kt in range(2)] if ksmajor else [(kt, ks) for kt in range(2) for ks in range(8)]
    return [U([(vr(Y+8*qt+4*kt,4), vr(qreg(qt,ks),4), "0" if ks == 0 else vr(Y+8*qt+4*kt,4)) for qt in range(nq)],
              kload(base + kt*512 + ks*64)) for kt, ks in order]
def u_pv(X, base, nq, first=False):
    return [U([(vr(oreg(qt,dt),4), vr(X+8*qt,4), "0" if first else vr(oreg(qt,dt),4)) for qt in range(nq)],
              trload(vAV, base + HALF + dt*32, base + HALF + 512 + dt*32)) for dt in range(16)]
def u_qp(nq, dtmajor=False):
    order = [(a, dt) for dt in range(16) for a in range(2)] if dtmajor else [(a, dt) for a in range(2) for dt in range(16)]
    return [U([(vr(oreg(qt,dt),4), vr(SB+4*(2*a+qt),4), vr(oreg(qt,dt),4)) for qt in range(nq)],
              trload(vAV, a*HALF + dt*32, a*HALF + 512 + dt*32), extra=[f"x{2*a+qt}" for qt in range(nq)]) for a, dt in order]
def u_op(acc, base, nq):
    return [U([(vr(acc+16*qt+4*nt,4), vr(qreg(qt,ks),4), "0" if ks == 0 else vr(acc+16*qt+4*nt,4)) for qt in range(nq)],
              trload(vAO+nt, base + ks*4096, base + ks*4096 + 2048)) for ks in range(8) for nt in range(4)]

def is_scalar(op): return isinstance(op, str) and op.startswith("s_")
def cost(op):
    if isinstance(op, tuple): return 1
    if op.startswith("v_exp") or op.startswith("v_rcp"): return 2
    return 1

FB6 = [F0 + 4*i for i in range(6)]
class Plan:
    def __init__(self, n, kind, bufs):
        self.n, self.kind, self.bufs = n, kind, bufs
        if kind == 6:
            self.pre = 5
            self.seq = ([0,1,2,3,4]*4 + [0,1,2,3,4,5]*2) if n == 32 else ([0,1,2,3,4]*2 + [0,1,2,3,4,5])
        else:
            self.pre = 6
            self.seq = [m % 8 for m in range(n)]
    def reg(self, m): return self.bufs[self.seq[m]]

def emit_block(e, cfg, name, us, plan, nxt, nplan, nxtname, fixed=None, streams=(), barrier=True, post=None, scal=(), force=None):
    n = len(us); G = 2*n
    two = len(us[0].mf) == 2
    D = {g: [] for g in range(G)}; V = {g: [] for g in range(G)}; S = {g: [] for g in range(G)}
    for g, ops in (fixed or {}).items():
        for op in ops:
            (D if isinstance(op, tuple) else S if is_scalar(op) and not V[g] and not op.startswith("s_nop") and not op.startswith("s_waitcnt") else V)[g].append(op)
    def rd(u, pl, m, nm): return [(ld(pl.reg(m)), (nm, m)) for ld in u.loads]
    if plan.kind == 6:
        ig = {m: (m-5 if m <= n-8 else m-6) for m in range(n)} if n == 32 else {m: m-5 for m in range(n)}
        if n == 16: ig[15] = 9
        for m in range(plan.pre, n):
            r = rd(us[m], plan, m, name); g = 2*ig[m] + 1
            if n == 32 and m == n-7:
                gs = cfg_extra_gaps if len(r) == 2 else [g]
                for it, gg in zip(r, gs): D[gg].append(it)
                continue
            if len(D[g]) + len(r) > 2: g += 1
            D[g] += r
        bar = G - 9
    else:
        rs = [it for m in range(plan.pre, n) for it in rd(us[m], plan, m, name)]
        per = len(us[0].loads)
        assert per == 2
        k = 0; acc_from = 36
        for g in range(1, G):
            cap = 2 if (g >= acc_from and g % 2 == 1) else 1
            while cap and k < len(rs):
                m = rs[k][1][1]
                if g < 2*(m-8) + 1: break
                D[g].append(rs[k]); k += 1; cap -= 1
            if k == len(rs): last = g; break
        bar = last + 4
    if nxt is not None:
        rs = (post or []) + [it for m in range(nplan.pre) for it in rd(nxt[m], nplan, m, nxtname)]
        busy = {}
        for m in range(n): busy[plan.reg(m)] = 2*m + 1
        g = bar + 1; left = len(rs)
        for it in rs:
            fr = busy.get(nplan.reg(it[1][1]), -1) if isinstance(it[1], tuple) else -1
            while True:
                room = 2 - len(D[g]) - sum(cost(o) for o in V[g])
                want2 = left > (G - g - (1 if D[g] else 0))
                if g >= fr and (g == G-1 or (room > 0 and (not D[g] or want2))): break
                g += 1
            D[g].append(it); left -= 1
    left_over = []
    for st in streams:
        g = 0; k = 0
        while k < len(st) and g < G:
            op, eg = st[k]
            room = 2 - len(D[g]) - sum(cost(o) for o in V[g])
            if g >= eg and room >= cost(op): V[g].append(op); k += 1
            else: g += 1
        left_over.append(st[k:])
    for g, ops in (force or {}).items(): V[g] += ops
    if scal:
        g = scal[0]
        for op in scal[1:]:
            while g % 2 == 1 or S[g]: g += 1
            S[g].append(op)
    def put(g, wait=None):
        for op in S[g]: e(op)
        if wait: e.wait(wait)
        for it in D[g]: e.ds(*it)
        for op in V[g]: e(op)
        if g == bar and barrier:
            if cfg.formal: e.waitall()
            if barrier is True: e("s_barrier")
            else:
                e(barrier[0]); e(f"s_cbranch_scc1 {barrier[1]}"); e("s_barrier"); e(f"{barrier[1]}:")
    e.wait({(name, 0)} | set(us[0].extra))
    for m in range(n):
        u = us[m]; A = vr(plan.reg(m), 4)
        w = ({(name, m+1)} | set(us[m+1].extra)) if m + 1 < n else (({(nxtname, 0)} | set(nxt[0].extra)) if nxt is not None else None)
        d, b, c = u.mf[0]
        e(f"v_mfma_f32_16x16x32_bf16 {d}, {A}, {b}, {c}")
        put(2*m)
        if two:
            d, b, c = u.mf[1]
            e(f"v_mfma_f32_16x16x32_bf16 {d}, {A}, {b}, {c}")
        elif V[2*m] and V[2*m][-1].startswith(("v_exp", "v_rcp")): e("s_nop 0")
        put(2*m+1, w)
    return left_over, bar
cfg_extra_gaps = [17, 19]

def rename(e, old, new):
    e.q = [((new, t[1]) if isinstance(t, tuple) and t[0] == old else t) for t in e.q]

def elems(nq):
    o = [(0,0),(0,1),(0,2),(0,3),(1,0),(1,1),(1,2),(1,3),(0,4),(0,5),(0,6),(0,7),(1,4),(1,5),(1,6),(1,7)]
    return [x if x[0] < nq else None for x in o]
GEN = [False]
def sm_exp(S, el):
    if el is None: return []
    r = S + 8*el[0] + el[1]
    pre = [f"v_max_f32 v{vMX+el[0]}, v{vMX+el[0]}, v{r}", f"v_add_f32 v{r}, v{vNEG+el[0]}, v{r}"] if GEN[0] else []
    return pre + [f"v_exp_f32 v{r}, v{r}"]
def sm_post(S, el):
    if el is None: return []
    r = S + 8*el[0]
    o = [f"v_add_f32 v{vL+el[0]}, v{vL+el[0]}, v{r+el[1]}"]
    if el[1] % 2: o.append(f"v_cvt_pk_bf16_f32 v{r+el[1]//2}, v{r+el[1]-1}, v{r+el[1]}")
    return o
SM0 = 14
def sm_tail(fill, Y, nq):
    el = elems(nq)
    for u in range(SM0, 32):
        k = u - SM0
        fill.setdefault(2*u, []).extend(sm_exp(Y, el[k//2]) if k % 2 == 0 else sm_post(Y, el[k//2]))
def sm_head_list(X, nq):
    el = elems(nq); r = []
    for u in range(32, SM0 + 32):
        k = u - SM0
        r.append(sm_exp(X, el[k//2]) if k % 2 == 0 else sm_post(X, el[k//2]))
    return r
def sm_head(fill, X, nq):
    for u, ops in enumerate(sm_head_list(X, nq)): fill.setdefault(2*u, []).extend(ops)

def spread(fill, ops, gaps, per):
    i = 0
    for g in gaps:
        for _ in range(per):
            if i < len(ops): fill.setdefault(g, []).append(ops[i]); i += 1
    return ops[i:]

def gen(cfg):
    e = Em()
    KA = "standalone__mha_block_cached__near_ridge_kernel"
    hdr = f"""; fused MHA block: Q projection + attention + output projection + cross-workgroup head reduction
; @launch grid=(256,1,1) block=(512,1,1) lds={LDS_BYTES}
.amdgcn_target "amdgcn-amd-amdhsa--gfx950"
.text
.globl {KA}
.p2align 8
.type {KA},@function
{KA}:"""
    nst = [0]
    def stamp():
        if not cfg.stamps: return
        i = nst[0]; nst[0] += 1
        e(f"s_memrealtime s[{sSTAMP}:{sSTAMP+1}]\ns_memtime s[90:91]\ns_waitcnt lgkmcnt(0)\ns_mov_b32 s{72+i}, s{sSTAMP}\ns_mov_b32 s{80+i}, s90")
        e.q = []
    if cfg.stamps: e("s_memrealtime s[98:99]")
    e("s_cmp_ge_u32 s2, 256\ns_cbranch_scc1 LA_end")
    e("s_load_dwordx16 s[4:19], s[0:1], 0")
    e(f"v_lshrrev_b32 v1, 6, v0\nv_and_b32 v0, 63, v0\nv_readfirstlane_b32 s{sWAVE}, v1")
    e(f"""s_and_b32 s{sT0}, s2, 7
s_lshr_b32 s{sT1}, s2, 3
s_and_b32 s{sHALF}, s{sT1}, 1
s_lshr_b32 s{sT1}, s{sT1}, 1
s_lshr_b32 s{sT2}, s{sT1}, 2
s_and_b32 s{sT3}, s{sT1}, 3
s_lshr_b32 s{sB}, s{sT0}, 2
s_lshl_b32 s{sB}, s{sB}, 2
s_add_u32 s{sB}, s{sB}, s{sT2}
s_and_b32 s{sH}, s{sT0}, 3
s_lshl_b32 s{sH}, s{sH}, 2
s_add_u32 s{sH}, s{sH}, s{sT3}
s_lshl_b32 s{sROTO}, s{sT2}, 1
s_add_u32 s{sROTO}, s{sROTO}, s{sHALF}
s_lshl_b32 s{sG}, s{sB}, 1
s_add_u32 s{sG}, s{sG}, s{sHALF}""")
    R = cfg.rotq
    if R == 7:
        tb = [[(r + n) % 7 for n in range(7)] for r in range(7)]
        e(f"s_lshl_b32 s{sT0}, s{sT3}, 1\ns_add_u32 s{sT0}, s{sT0}, s{sROTO}\ns_sub_u32 s{sT1}, s{sT0}, 7\ns_cmp_ge_u32 s{sT0}, 7\ns_cselect_b32 s{sT0}, s{sT1}, s{sT0}")
    else:
        tb = []
        for r in range(R):
            o = []; base = 0
            while base < 7:
                w = min(R, 7 - base)
                o += [base + (r + n) % w for n in range(w)]; base += w
            tb.append(o)
        assert R in (1, 2, 4)
        e(f"s_add_u32 s{sT0}, s{sT3}, s{sROTO}\ns_and_b32 s{sT0}, s{sT0}, {R-1}")
    pk = [sum(c << (4*n) for n, c in enumerate(o)) for o in tb]
    e(f"s_mov_b32 s{sTBL}, {hex(pk[0])}")
    for r in range(1, len(pk)): e(f"s_cmp_eq_u32 s{sT0}, {r}\ns_cselect_b32 s{sTBL}, {hex(pk[r])}, s{sTBL}")
    e(f"s_cmp_eq_u32 s{sROTO}, 7\ns_cselect_b32 s{sROTO}, 0, s{sROTO}")
    e("s_waitcnt lgkmcnt(0)")
    for srd, p, nb in ((sX,4,1605632),(sWQ,10,3670016),(sK,6,67108864),(sV,8,67108864),(sWO,12,3670016),(sWS,18,268435456),(sOUT,14,1605632)):
        e(f"s_mov_b32 s{srd}, s{p}\ns_mov_b32 s{srd+1}, s{p+1}\ns_mov_b32 s{srd+2}, {nb}\ns_mov_b32 s{srd+3}, 0x20000")
    e(f"s_mov_b32 s{sMODE}, 0\ns_cmp_lt_u32 s{sWAVE}, 4\ns_cbranch_scc1 LA_compute")

    if cfg.prio_h: e(f"s_setprio {cfg.prio_h}")
    vKV, vW, vXX, vO = 2, 3, 4, 5
    e(f"s_sub_u32 s{sWAVE}, s{sWAVE}, 4")
    e("LA_hrestart:")
    e(f"""v_lshrrev_b32 v8, 3, v0
v_mul_u32_u24 v{vXX}, {16*896}, v8
v_and_b32 v9, 7, v0
v_lshl_add_u32 v{vXX}, v9, 4, v{vXX}
v_cmp_eq_u32 vcc, 7, v8
v_mov_b32 v10, 0x70000000
v_lshrrev_b32 v6, 5, v0
v_cndmask_b32 v{vXX}, v{vXX}, v10, vcc
v_and_b32 v7, 31, v0
v_lshlrev_b32 v7, 4, v7
v_lshl_add_u32 v{vW}, v6, 15, v7""")
    e(f"""s_mul_i32 s{sLV}, s{sWAVE}, {4*ST}
s_lshl_b32 s{sWOFF}, s{sH}, 9
s_lshl_b32 s{sT0}, s{sWAVE}, 16
s_add_u32 s{sWOFF}, s{sWOFF}, s{sT0}
s_mul_i32 s{sXOFF}, s{sG}, 112
s_lshl_b32 s{sT0}, s{sWAVE}, 2
s_add_u32 s{sXOFF}, s{sXOFF}, s{sT0}
s_mul_i32 s{sXOFF}, s{sXOFF}, 896""")
    def dma(srd, voff, sreg, simm, mreg, mimm, nt=False):
        e(f"s_add_u32 m0, s{mreg}, {mimm}\ns_add_u32 s{sT0}, s{sreg}, {simm}\nbuffer_load_dwordx4 v{voff}, {sr(srd)}, s{sT0} offen {'nt ' if nt else ''}lds")
    def adv_ch():
        e(f"s_add_u32 s{sCH}, s{sCH}, 1\ns_cmp_eq_u32 s{sCH}, 7\ns_cselect_b32 s{sCH}, 0, s{sCH}")
    def koff(j): return j*1024 + 16*((j & 1) + 4*(j >> 1))
    def issue(n, kvbase=0):
        if n <= 6:
            sl = (n + 2) % 3
            e(f"s_bfe_u32 s{sCH}, s{sTBL}, {hex(0x30000 | (4*n))}")
            e(f"s_lshl_b32 s{sT1}, s{sCH}, 7\ns_add_u32 s{sT1}, s{sT1}, s{sXOFF}\ns_lshl_b32 s{sT2}, s{sCH}, 19\ns_add_u32 s{sT2}, s{sT2}, s{sWOFF}")
            for j in range(4): dma(sX, vXX, sT1, j*896, sLV, XBASE + sl*XT + j*ST)
            for a in range(2):
                for j in range(4): dma(sWQ, vW, sT2, (32*a + j)*8192, sLV, sl*PAIR + a*HALF + j*ST)
            return 12
        sl = (n + 1) % 4
        if n <= 39:
            i = n - 8; c = 0
            if cfg.nokv and n > 10: return 0
            if i + 1 <= 31:
                for j in range(4): dma(sK, vKV, sKVOFF, (i+1-kvbase)*16384 + j*512, sLV, sl*PAIR + koff(j), cfg.nt_kv)
                c += 4
            if i >= 0:
                for j in range(4): dma(sV, vKV, sKVOFF, (i-kvbase)*16384 + j*512, sLV, sl*PAIR + HALF + j*ST, cfg.nt_kv)
                c += 4
            return c
        e(f"s_lshl_b32 s{sT1}, s{sCH}, 7\ns_add_u32 s{sT1}, s{sT1}, s{sOOFF}")
        for j in range(8): dma(sWO, vO, sT1, j*8*896, sLO, sl*PAIR + (0 if sl % 2 else OBIAS) + j*1024)
        adv_ch()
        return 8
    assert 4*ST == 4096 + 128
    out = []
    def do_issue(n, kvbase=0): out.append((n, issue(n, kvbase)))
    def wait_step(n):
        while out and out[0][0] <= n: out.pop(0)
        e(f"s_waitcnt vmcnt({sum(c for _, c in out)})")
    do_issue(0)
    e("s_getpc_b64 s[68:69]\nLA_pc:")
    e(f"s_sub_u32 s68, s68, LA_pc-{KA}\ns_subb_u32 s69, s69, 0")
    e(f"v_lshlrev_b32 v11, 7, v0\ns_lshl_b32 s{sT0}, s{sWAVE}, 13\nv_add_u32 v11, s{sT0}, v11\nv_min_u32 v11, LA_endoftext-{KA}-4, v11")
    e("global_load_dword v12, v11, s[68:69]")
    out.append((1, 1))
    do_issue(1); do_issue(2)
    e(f"""v_lshl_add_u32 v{vKV}, v6, 13, v7
v_mul_u32_u24 v{vO}, 896, v8
v_bfe_u32 v8, v0, 4, 2
v_lshlrev_b32 v8, 1, v8
v_xor_b32 v8, v8, v9
v_lshl_add_u32 v{vO}, v8, 4, v{vO}
s_lshl_b32 s{sLO}, s{sWAVE}, 13
s_lshl_b32 s{sKVOFF}, s{sB}, 4
s_add_u32 s{sKVOFF}, s{sKVOFF}, s{sH}
s_lshl_b32 s{sKVOFF}, s{sKVOFF}, 19
s_lshl_b32 s{sT0}, s{sWAVE}, 11
s_add_u32 s{sKVOFF}, s{sKVOFF}, s{sT0}
s_lshl_b32 s{sOOFF}, s{sH}, 8
s_lshl_b32 s{sT0}, s{sWAVE}, 6
s_add_u32 s{sOOFF}, s{sOOFF}, s{sT0}
s_mul_i32 s{sOOFF}, s{sOOFF}, 896""")
    sched = {1:[3],2:[4],3:[5],4:[6],5:[7],6:[8],7:[9,10]}
    for n in range(0, 8):
        wait_step(n); e("s_barrier")
        for s_ in sched.get(n, []): do_issue(s_)
    e(f"s_mov_b32 s{sCNT}, 7")
    e("LA_hloop:")
    entry = [c for _, c in out]
    for n in range(8, 12):
        wait_step(n); e("s_barrier"); do_issue(n+3)
    assert cfg.nokv or [c for _, c in out] == entry
    e(f"s_add_u32 s{sKVOFF}, s{sKVOFF}, {4*16384}\ns_sub_u32 s{sCNT}, s{sCNT}, 1\ns_cmp_lg_u32 s{sCNT}, 0\ns_cbranch_scc1 LA_hloop")
    out = [(s_ + 24, c) for s_, c in out]
    e(f"s_mov_b32 s{sCH}, s{sROTO}")
    e(f"s_lshl_b32 s{sT0}, s{sG}, 2\ns_load_dword s{sRDY}, s[16:17], s{sT0}")
    for n in range(36, 45):
        if n == 40:
            e(f"s_waitcnt lgkmcnt(0)\ns_cmp_eq_u32 s{sRDY}, 0\ns_cbranch_scc1 LA_hn\nLA_hnret:")
        wait_step(n if n < 44 else 46)
        e("s_barrier")
        if n == 41: e(f"v_mov_b32 v12, {LDS_FLAG}\nds_read_b128 v[16:19], v12")
        if n + 3 <= 46: do_issue(n+3, kvbase=28)
        if n == 41:
            e("s_waitcnt lgkmcnt(0)\nv_or3_b32 v16, v16, v17, v18\nv_or_b32 v16, v16, v19\nv_cmp_ne_u32 vcc, 0, v16\ns_cbranch_vccnz LA_hredo")
    e(f"s_cmp_ge_u32 s{sH}, {0 if cfg.noreduce else 14}\ns_cbranch_scc1 LA_end")
    hw = sT2
    sPB, sFB, sOB, sJ, sTO = sXOFF, sKVOFF, sOOFF, sCNT, sDELTA
    e(f"""s_lshr_b32 s{hw}, s{sH}, 2
s_lshl_b32 s{sPB}, s{sG}, 6
s_add_u32 s{sPB}, s{sPB}, s{hw}
s_mul_i32 s{sPB}, s{sPB}, {28*1024}
s_bfe_u32 s{sT0}, s{sH}, 0x10001
s_lshl_b32 s{sT0}, s{sT0}, 11
s_add_u32 s{sPB}, s{sPB}, s{sT0}
s_and_b32 s{sT0}, s{sH}, 1
s_lshl_b32 s{sT0}, s{sT0}, 7
s_add_u32 s{sPB}, s{sPB}, s{sT0}
s_mul_i32 s{sFB}, s{sG}, 28
s_add_u32 s{sFB}, s{sFB}, s{hw}
s_mul_i32 s{sFB}, s{sFB}, {cfg.fstride}
s_add_u32 s{sFB}, s{sFB}, {FLAGBASE}
s_mul_i32 s{sOB}, s{sG}, 112
s_lshl_b32 s{sT0}, s{sH}, 3
s_add_u32 s{sOB}, s{sOB}, s{sT0}
s_mul_i32 s{sOB}, s{sOB}, 896
s_mov_b32 s{sJ}, s{sWAVE}
v_lshrrev_b32 v8, 3, v0
v_and_b32 v9, 7, v0
v_lshlrev_b32 v2, 8, v8
v_lshl_add_u32 v2, v9, 4, v2
v_mul_u32_u24 v3, 896, v9
v_lshrrev_b32 v10, 5, v0
v_lshl_add_u32 v3, v10, 6, v3
v_and_b32 v8, 3, v8
v_lshl_add_u32 v3, v8, 3, v3
v_mov_b32 v4, 0""")
    e("LA_rloop:")
    e(f"""s_add_u32 s{sCH}, s{sROTO}, s{sJ}
s_sub_u32 s{sT0}, s{sCH}, 7
s_cmp_ge_u32 s{sCH}, 7
s_cselect_b32 s{sCH}, s{sT0}, s{sCH}
s_mul_i32 s{sT1}, s{sCH}, {4*cfg.fstride}
s_add_u32 s{sT1}, s{sT1}, s{sFB}
s_mov_b32 s{sTO}, 30000
s_mov_b64 exec, 1""")
    if cfg.stamps: e("s_memrealtime s[76:77]")
    e("LA_poll:")
    e(f"""v_mov_b32 v84, 0
s_sub_u32 s{sTO}, s{sTO}, 1
buffer_atomic_add v84, v4, {sr(sWS)}, s{sT1} offen sc0 sc1
s_waitcnt vmcnt(0)
v_cmp_ne_u32 vcc, 16, v84
s_cbranch_vccz LA_go
s_sleep {cfg.sleep}
s_cmp_lg_u32 s{sTO}, 0
s_cbranch_scc1 LA_poll""")
    e("LA_go:")
    e("s_mov_b64 exec, -1")
    if cfg.stamps: e("s_memrealtime s[78:79]")
    e(f"s_lshl_b32 s{sT0}, s{sCH}, 12\ns_add_u32 s{sT0}, s{sT0}, s{sPB}")
    for h in range(16):
        if cfg.rb < 16 and h and h % cfg.rb == 0:
            e(f"s_cmp_ge_u32 s{sJ}, 4\ns_cbranch_scc1 LA_rb{h}\ns_waitcnt vmcnt(0)\nLA_rb{h}:")
        e(f"buffer_load_dwordx4 {vr(16+4*h,4)}, v2, {sr(sWS)}, s{sT0} offen {cfg.ld_flags}")
        if h < 15: e(f"s_add_u32 s{sT0}, s{sT0}, {4*28*1024}")
    for h in range(16):
        e(f"s_waitcnt vmcnt({15-h})")
        for k in range(4):
            r = 16 + 4*h + k
            if h == 0:
                e(f"v_lshlrev_b32 v{8+2*k}, 16, v{r}\nv_and_b32 v{9+2*k}, 0xffff0000, v{r}")
            else:
                e(f"v_lshlrev_b32 v5, 16, v{r}\nv_and_b32 v6, 0xffff0000, v{r}\nv_add_f32 v{8+2*k}, v{8+2*k}, v5\nv_add_f32 v{9+2*k}, v{9+2*k}, v6")
    if cfg.stamps: e("s_memrealtime s[80:81]")
    for k in range(4): e(f"v_cvt_pk_bf16_f32 v{80+k}, v{8+2*k}, v{9+2*k}")
    e(f"s_lshl_b32 s{sT0}, s{sCH}, 7\ns_add_u32 s{sT0}, s{sT0}, s{sOB}")
    e(f"buffer_store_dwordx2 v[80:81], v3, {sr(sOUT)}, s{sT0} offen {cfg.out_flags}")
    e(f"buffer_store_dwordx2 v[82:83], v3, {sr(sOUT)}, s{sT0} offen offset:32 {cfg.out_flags}")
    e(f"s_add_u32 s{sJ}, s{sJ}, 4\ns_cmp_lt_u32 s{sJ}, 7\ns_cbranch_scc1 LA_rloop")
    if cfg.stamps:
        e(f"s_waitcnt vmcnt(0) lgkmcnt(0)")
        e(f"v_mov_b32 v0, s76\nv_mov_b32 v1, s78\nv_mov_b32 v2, s{sTO}\nv_mov_b32 v3, s80\nv_mov_b32 v8, 0")
        e(f"s_lshl_b32 s{sT0}, s2, 2\ns_add_u32 s{sT0}, s{sT0}, s{sWAVE}\ns_lshl_b32 s{sT0}, s{sT0}, 4\ns_add_u32 s{sT0}, s{sT0}, 0x8100000\ns_mov_b64 exec, 1")
        e(f"buffer_store_dwordx4 v[0:3], v8, {sr(sWS)}, s{sT0} offen")
    e("LA_end:\ns_endpgm")
    e("LA_hredo:\ns_waitcnt vmcnt(0)\ns_barrier\ns_branch LA_hrestart")
    e("LA_hn:")
    e(f"s_lshl_b32 s{sT0}, s{sG}, 2\nv_mov_b32 v12, s{sT0}\ns_mov_b32 s{sT1}, 30000")
    e("LA_hn1:")
    e(f"""global_load_dword v13, v12, s[16:17] sc0 sc1
s_sub_u32 s{sT1}, s{sT1}, 1
s_waitcnt vmcnt(0)
v_cmp_eq_u32 vcc, 0, v13
s_cbranch_vccz LA_hnret
s_cmp_lg_u32 s{sT1}, 0
s_cbranch_scc1 LA_hn1
s_branch LA_hnret""")

    e(".p2align 6\nLA_compute:")
    if cfg.prio_c: e(f"s_setprio {cfg.prio_c}")
    stamp()
    e("LA_crestart:")
    t = SA
    ln = vT3
    e(f"v_mbcnt_lo_u32_b32 v{ln}, -1, 0\nv_mbcnt_hi_u32_b32 v{ln}, -1, v{ln}\ns_mov_b32 s{sC}, {hex(f2u(C_SCALE))}")
    e(f"""v_lshrrev_b32 v{t}, 4, v{ln}
v_and_b32 v{t+1}, 15, v{ln}
v_lshrrev_b32 v{t+2}, 2, v{ln}
v_and_b32 v{t+3}, 3, v{ln}
v_mul_u32_u24 v{vT0}, {ST}, v{t+2}
v_lshl_add_u32 v{vT0}, v{t+3}, 3, v{vT0}
v_add_u32 v{vAV}, {2*PAIR}, v{vT0}
v_mul_u32_u24 v{vAK}, {ST}, v{t+1}
v_lshl_add_u32 v{vAK}, v{t}, 4, v{vAK}
s_lshl_b32 s{sT0}, s{sWAVE}, 8
s_add_u32 s{sT0}, s{sT0}, {XBASE + 2*XT}
v_add_u32 v{vAK}, s{sT0}, v{vAK}
v_lshrrev_b32 v{t+4}, 1, v{t+1}
v_and_b32 v{t+5}, 1, v{ln}
v_lshl_add_u32 v{t+4}, v{t+4}, 2, v{t+5}
v_bfe_u32 v{t+5}, v{ln}, 4, 1
v_lshl_add_u32 v{t+4}, v{t+5}, 1, v{t+4}
v_lshrrev_b32 v{t+5}, 5, v{ln}
v_add_u32 v{t+4}, v{t+4}, v{t+5}
v_lshlrev_b32 v{vT1}, 10, v{t+1}
v_lshl_add_u32 v{vT1}, v{t+4}, 4, v{vT1}""")
    e(f"s_or_b32 s{sT0}, s{sWAVE}, s{sH}\ns_or_b32 s{sT0}, s{sT0}, s{sMODE}\ns_cmp_lg_u32 s{sT0}, 0\ns_cbranch_scc1 LA_noinit")
    e(f"s_mul_i32 s{sT0}, s{sG}, {28*cfg.fstride}\ns_add_u32 s{sT0}, s{sT0}, {FLAGBASE}")
    e(f"v_mul_u32_u24 v{Q0}, {cfg.fstride}, v{ln}\nv_mov_b32 v{Q0+1}, 0\ns_mov_b64 exec, 0xfffffff")
    e(f"buffer_store_dword v{Q0+1}, v{Q0}, {sr(sWS)}, s{sT0} offen sc0 sc1\ns_mov_b64 exec, -1")
    e("LA_noinit:")
    for i in range(0, 128, 2): e(f"v_mov_b64 {vr(i,2)}, 0")
    e(f"v_mov_b64 {vr(vL,2)}, 0")
    e(f"s_mov_b32 s{sCNT}, 6\ns_mov_b32 s{sIDX}, 2")
    if cfg.w3: e(f"s_cmp_eq_u32 s{sWAVE}, 3\ns_cbranch_scc1 LA_c1")
    nst0 = nst[0]

    def compute(nq):
        global vAO
        sfx = str(nq)
        nst[0] = nst0
        e.q = []
        P32 = Plan(32, 6, FB6); P16 = Plan(16, 6, FB6)
        PQ = Plan(32, 8, FB6 + [SA, SA+4])
        PO = Plan(32, 8, FB6 + [72, 76])
        e("s_barrier")
        stamp()
        qp = u_qp(nq)
        def xload(i): return (f"ds_read_b128 {vr(SB+4*i,4)}, v{vAK} offset:{(i & 1)*128 + (i >> 1)*64}", f"x{i}")
        x0 = [xload(i) for i in range(nq)]; x1 = [xload(2+i) for i in range(nq)]
        for it in x0: e.ds(*it)
        for mm in range(PQ.pre):
            for ld in qp[mm].loads: e.ds(ld(PQ.reg(mm)), ("qp", mm))
        e.wait({("qp", 0)})
        ent = list(e.q)
        e(f".p2align 3\nLA_qp{sfx}:")
        scal = [20, f"s_add_u32 s{sIDX}, s{sIDX}, 1", f"s_cmp_eq_u32 s{sIDX}, 3", f"s_cselect_b32 s{sIDX}, 0, s{sIDX}", f"s_cselect_b32 s{sDELTA}, -2, 1",
                f"s_mul_i32 s{sD2}, s{sDELTA}, {XT}", f"s_mul_i32 s{sDELTA}, s{sDELTA}, {PAIR}", f"s_sub_u32 s{sCNT}, s{sCNT}, 1", f"s_cmp_lg_u32 s{sCNT}, 0"]
        fx = {6: [x1[0]], 49: [f"v_add_u32 v{vAV}, s{sDELTA}, v{vAV}", f"v_add_u32 v{vAK}, s{sD2}, v{vAK}"]}
        if nq == 2: fx[10] = [x1[1]]
        sv = list(e.L)
        _, bar = emit_block(e, cfg, "qp", qp, PQ, qp, PQ, "qpn", fixed=fx, post=x0, scal=scal)
        assert bar == 51, bar
        rename(e, "qpn", "qp"); steady = list(e.q)
        assert steady == ent[len(ent)-len(steady):] , (steady, ent)
        e.L, e.q = sv, list(ent)
        emit_block(e, cfg, "qp", qp, PQ, qp, PQ, "qpn", fixed=fx, post=x0, scal=scal)
        rename(e, "qpn", "qp"); assert e.q == steady
        e(f"s_cbranch_scc1 LA_qp{sfx}")
        allu = {(a, dt): qp[a*16+dt] for a in range(2) for dt in range(16)}
        order = [(0, dt) for dt in range(6)]
        for dt in range(16):
            order.append((1, dt))
            if dt + 6 < 16: order.append((0, dt+6))
        ql = [allu[k] for k in order]
        fin = {dt: order.index((1, dt)) for dt in range(16)}
        def qconv(ks, pk=False):
            ops = []
            for qt in range(nq):
                b = oreg(qt, 2*ks); q = qreg(qt, ks)
                if pk: ops += [f"v_pk_mul_f32 {vr(b+k,2)}, {vr(b+k,2)}, {sr(sC,2)} op_sel_hi:[1,0]" for k in range(0, 8, 2)]
                else: ops += [f"v_mul_f32 v{b+k}, s{sC}, v{b+k}" for k in range(8)]
                ops += [f"v_cvt_pk_bf16_f32 v{q+k}, v{b+2*k}, v{b+2*k+1}" for k in range(4)]
            return ops
        def qswap(ks):
            return [f"v_permlane16_swap_b32 v{qreg(qt,ks)+k}, v{qreg(qt,ks)+k+2}" for qt in range(nq) for k in range(2)]
        dly = 6 if nq == 2 else 10
        NA = cfg.convA if nq == 2 else 4
        NC = cfg.convC if nq == 2 else 3
        st = []
        for ks in range(NA):
            st += [(op, 2*fin[2*ks+1] + dly) for op in qconv(ks)]
            if ks: st += [(op, 0) for op in qswap(ks-1)]
        fx = {2: [x1[0]], 49: [f"v_mov_b32 v{vAK}, v{vT1}", f"v_mov_b32 v{vAV}, v{vT0}"]}
        if nq == 2: fx[4] = [x1[1]]
        qk0 = u_qk(SA + 0, 0, nq, ksmajor=True)
        lo, _ = emit_block(e, cfg, "qp", ql, PQ, qk0, P16, "qk0", fixed=fx, streams=[st])
        if cfg.stamps: stamp()
        if nq == 2:
            e(f"s_or_b32 s{sT0}, s{sWAVE}, s{sH}\ns_cmp_lg_u32 s{sT0}, 0\ns_cbranch_scc1 LA_noinit2")
            e(f"s_lshl_b32 s{sT0}, s{sG}, 2\nv_mov_b32 v{vT2}, s{sT0}\nv_mov_b32 v{vT3}, 1\ns_mov_b64 exec, 1\ns_waitcnt vmcnt(0)")
            e(f"global_store_dword v{vT2}, v{vT3}, s[16:17] sc0 sc1\ns_mov_b64 exec, -1")
            e("LA_noinit2:")
        for op, _ in lo[0]: e(op)
        if nq == 1: e("s_nop 3")
        for ks in range(NA, 8):
            ops = qconv(ks, pk=True)
            if ks >= 8 - NC: ops = [o for o in ops if "pk_mul" in o]
            for op in ops: e(op)
            if ks < 8 - NC or ks == 8 - NC:
                for op in qswap(ks-1): e(op)
        st = []
        for ks in range(8 - NC, 8):
            st += [(o, 0) for o in qconv(ks) if "cvt" in o]
            st += [("s_nop 0", 0)] * (1 if nq == 2 else 2) + [(o, 0) for o in qswap(ks)]
        e("s_nop 1")
        st8 = u_qk(SB, PAIR, nq) + u_pv(SA, PAIR, nq, first=True)
        lo, _ = emit_block(e, cfg, "qk0", qk0, P16, st8, P32, "m", streams=[st])
        assert not lo[0]
        pvl = u_pv(SB, 0, nq)
        t = SA
        q_att = list(e.q)
        def attention(tag):
            el = elems(nq)
            st = []
            for k in range(17):
                if k < 16: st += [(o, 4 if nq == 2 else 8) for o in sm_exp(SA, el[k])]
                if k: st += [(o, 0) for o in sm_post(SA, el[k-1])]
            pre = st[:0]
            fx = {}; sm_tail(fx, SB, nq)
            g = 4 if nq == 2 else 8
            per = (len(st) + (29 - g)) // (30 - g)
            for k in range(0, len(st), per):
                fx[g] = [o for o, _ in st[k:k+per]] + fx.get(g, []); g += 1
            assert g <= 30
            fx.setdefault(53, []).extend([f"v_add_u32 v{vAK}, {2*PAIR}, v{vAK}", f"v_add_u32 v{vAV}, {2*PAIR}, v{vAV}"])
            lA = u_qk(SA, 0, nq) + u_pv(SB, 0, nq)
            lB = u_qk(SB, PAIR, nq) + u_pv(SA, PAIR, nq)
            emit_block(e, cfg, "m", st8, P32, lA, P32, "mA", fixed=fx, scal=[40, f"s_mov_b32 s{sCNT}, 15", f"s_mov_b32 s{sDELTA}, {(-2*PAIR) & 0xffffffff}"])
            q_entry = list(e.q)
            e(f".p2align 3\nLA_main{sfx}{tag}:")
            fx = {}; sm_head(fx, SB, nq); sm_tail(fx, SA, nq)
            emit_block(e, cfg, "mA", lA, P32, lB, P32, "mB", fixed=fx)
            fx = {}; sm_head(fx, SA, nq); sm_tail(fx, SB, nq)
            fx.setdefault(53, []).extend([f"v_add_u32 v{vAK}, s{sDELTA}, v{vAK}", f"v_add_u32 v{vAV}, s{sDELTA}, v{vAV}"])
            emit_block(e, cfg, "mB", lB, P32, lA, P32, "mA", fixed=fx,
                       scal=[56, f"s_sub_u32 s{sDELTA}, 0, s{sDELTA}", f"s_sub_u32 s{sCNT}, s{sCNT}, 1", f"s_cmp_lg_u32 s{sCNT}, 0"])
            assert e.q == q_entry, (e.q, q_entry)
            e(f"s_cbranch_scc1 LA_main{sfx}{tag}")
            if not tag: stamp()
            else: e.q = [] if cfg.stamps else e.q
            if tag and cfg.stamps: e('s_waitcnt lgkmcnt(0)')
            rename(e, "mA", "junk")
            pvl = u_pv(SB, 0, nq)
            for mm in range(5):
                for ld in pvl[mm].loads: e.ds(ld(P16.reg(mm)), ("pvl", mm))
            hl = sm_head_list(SB, nq)
            ex = [o for k_, ops in enumerate(hl) for o in ops if k_ % 2 == 0]; ot = [o for k_, ops in enumerate(hl) for o in ops if k_ % 2 == 1]
            for o in ex: e(o)
            t = SA
            e(f"v_mbcnt_lo_u32_b32 v{t+2}, -1, 0")
            for o in ot: e(o)
        e(f"s_cmp_lg_u32 s{sMODE}, 0\ns_cbranch_scc1 LA_gen{sfx}")
        attention("")
        q_join = list(e.q)
        e(f"LA_join{sfx}:")
        e(f"v_mbcnt_hi_u32_b32 v{t+2}, -1, v{t+2}\nv_lshrrev_b32 v{t+3}, 2, v{t+2}")
        misc = f"""v_lshlrev_b32 v{t+3}, 7, v{t+3}
v_bfe_u32 v{t+4}, v{t+2}, 3, 2
v_lshl_add_u32 v{t+3}, v{t+4}, 5, v{t+3}
v_and_b32 v{t+4}, 3, v{t+2}
v_lshl_add_u32 v{t+3}, v{t+4}, 3, v{t+3}
v_add_u32 v{vT0}, {OBIAS}, v{t+3}
v_xor_b32 v{vT1}, 32, v{vT0}
v_xor_b32 v{vT2}, 64, v{vT0}
v_xor_b32 v{vT3}, 0x60, v{vT0}""".split("\n")
        def ocvt(ks): return [f"v_cvt_pk_bf16_f32 v{qreg(qt,ks)+k}, v{oreg(qt,2*ks)+2*k}, v{oreg(qt,2*ks)+2*k+1}" for qt in range(nq) for k in range(4)]
        st = [(o, 0) for o in misc] + [(o, 2*(2*ks+1) + dly) for ks in range(8) for o in ocvt(ks)]
        vAO = vT0
        op0 = u_op(ACC0, 32768, nq)
        lo, _ = emit_block(e, cfg, "pvl", pvl, P16, op0, PO, "o0", streams=[st])
        stamp()
        sFL = sD2; sCHF = sIDX
        opA = u_op(ACC1, 0, nq); opB = u_op(ACC0, 32768, nq)
        sal = f"""s_lshl_b32 s{sT1}, s{sG}, 2
s_lshl_b32 s{sT0}, s{sG}, 4
s_add_u32 s{sT0}, s{sT0}, s{sH}
s_lshl_b32 s{sT0}, s{sT0}, 2
s_add_u32 s{sT0}, s{sT0}, s{sWAVE}
s_mul_i32 s{sSTB}, s{sT0}, {28*1024}
s_mov_b32 s{sCH}, s{sROTO}
s_mul_i32 s{sFL}, s{sG}, 28
s_add_u32 s{sFL}, s{sFL}, s{sWAVE}
s_mul_i32 s{sFL}, s{sFL}, {cfg.fstride}
s_add_u32 s{sFL}, s{sFL}, {FLAGBASE}
s_mov_b32 s{sCHF}, s{sROTO}
s_mov_b32 s{sCNT}, 3
s_mov_b32 s{sDELTA}, {(-2*PAIR) & 0xffffffff}""".split("\n")
        a, b2 = 64, 65
        lo_t, hi_t = hex(f2u(2.0**-cfg.T)), hex(f2u(2.0**cfg.T))
        lred = f"""v_mov_b32 v{a}, v{vL}
v_mov_b32 v{b2}, v{vL+1}
v_mbcnt_lo_u32_b32 v{vSO}, -1, 0
v_mbcnt_hi_u32_b32 v{vSO}, -1, v{vSO}
v_permlane32_swap_b32 v{a}, v{vL}
v_permlane32_swap_b32 v{b2}, v{vL+1}
v_add_f32 v{vL}, v{vL}, v{a}
v_add_f32 v{vL+1}, v{vL+1}, v{b2}
v_mov_b32 v{a}, v{vL}
v_mov_b32 v{b2}, v{vL+1}
v_mov_b32 v{vONE}, {hi_t}
v_mov_b32 v{vRD}, s{sT1}
v_permlane16_swap_b32 v{a}, v{vL}
v_permlane16_swap_b32 v{b2}, v{vL+1}
v_add_f32 v{vL}, v{vL}, v{a}
v_add_f32 v{vL+1}, v{vL+1}, v{b2}""".split("\n")
        if nq == 1: lred = [o for o in lred if f"v{b2}" not in o.replace(f"v{b2}0", "")] ; lred.insert(3, "s_nop 0"); lred.insert(9, "s_nop 0")
        chk = [f"v_med3_f32 v{a}, v{vL}, s{sT2}, v{vONE}", f"v_cmp_neq_f32 vcc, v{a}, v{vL}"]
        if nq == 2: chk = [chk[0], f"v_med3_f32 v{b2}, v{vL+1}, s{sT2}, v{vONE}", chk[1], f"v_cmp_neq_f32 s[{sLK}:{sLK+1}], v{b2}, v{vL+1}"]
        late = f"""v_min_u32 v{vFOFF}, 1, v{vSO}
v_mul_u32_u24 v{vFOFF}, 0x700000, v{vFOFF}
v_lshlrev_b32 v{vFOFF}, 8, v{vFOFF}
v_lshlrev_b32 v{vSO}, 4, v{vSO}
v_mov_b32 v{vONE}, 1
v_rcp_f32 v{vL}, v{vL}
v_rcp_f32 v{vL+1}, v{vL+1}""".split("\n")
        adr = lambda d: [f"v_add_u32 v{vAO+i}, {d}, v{vAO+i}" for i in range(4)]
        rem = [(o, 3 if nq == 2 else 6) for o, _ in lo[0]]
        fx = {49: adr(2*PAIR)[:2], 50: adr(2*PAIR)[2:]}
        extra = lred + chk
        dec = ([f"s_or_b64 vcc, vcc, s[{sLK}:{sLK+1}]"] if nq == 2 else []) + [f"s_cmp_lg_u64 vcc, 0", f"s_cselect_b32 s{sT3}, 1, {1 if cfg.force else 0}",
               f"s_cmp_eq_u32 s{sMODE}, 0", f"s_cselect_b32 s{sT3}, s{sT3}, s{sMODE}", f"s_and_b32 s{sT3}, s{sT3}, 1"]
        sal2 = [f"s_lshl_b32 s{sT1}, s{sWAVE}, 2", f"s_add_u32 s{sT1}, s{sT1}, {LDS_FLAG}", f"s_mov_b32 s{sT2}, {lo_t}"] + sal[1:]
        for k_, o in enumerate(dec): fx[34 + 2*k_] = [o]
        fx[46] = fx.get(46, []) + [f"v_mov_b32 v{a}, s{sT3}"]
        fx[48] = [(f"ds_write_b32 v{vRD}, v{a}", "fw"), f"v_mov_b32 v{b2}, {LDS_FLAG}"]
        lo, bar = emit_block(e, cfg, "o0", op0, PO, opA, PO, "oA", fixed=fx, streams=[rem + [(o, 52) for o in late]], scal=[0] + sal2,
                             force={8 + k_: [o] for k_, o in enumerate(extra)}, post=[(f"ds_read_b128 v[80:83], v{b2}", "fr")])
        assert bar == 51 and cfg.formal
        for o, _ in lo[0]:
            assert "cvt" not in o
            e(o)
        assert "fr" not in e.q
        e(f"v_or3_b32 v80, v80, v81, v82\nv_or_b32 v80, v80, v83\nv_cmp_ne_u32 vcc, 0, v80\ns_cbranch_vccnz LA_redo{sfx}")
        q_entry = list(e.q)
        nstore = 2*nq
        def flag_sal(first=False):
            if first:
                return [f"s_mul_i32 s{sT1}, s{sCHF}, {4*cfg.fstride}", f"s_add_u32 s{sT1}, s{sT1}, s{sFL}", f"s_add_u32 s{sT2}, s{sCHF}, 1",
                        f"s_cmp_eq_u32 s{sT2}, 7", f"s_cselect_b32 s{sT2}, 0, s{sT2}", f"s_cmp_eq_u32 s{sCNT}, 3",
                        f"s_cselect_b32 s{sT1}, 0x7ff00000, s{sT1}", f"s_cselect_b32 s{sCHF}, s{sCHF}, s{sT2}"]
            return [f"s_mul_i32 s{sT1}, s{sCHF}, {4*cfg.fstride}", f"s_add_u32 s{sT1}, s{sT1}, s{sFL}", f"s_add_u32 s{sCHF}, s{sCHF}, 1",
                    f"s_cmp_eq_u32 s{sCHF}, 7", f"s_cselect_b32 s{sCHF}, 0, s{sCHF}"]
        def flag_op(cnt): return [f"s_waitcnt vmcnt({20 if cfg.nowait else cnt})", f"buffer_atomic_add v{vONE}, v{vFOFF}, {sr(sWS)}, s{sT1} offen sc1"]
        def store_sal():
            return [f"s_lshl_b32 s{sT0}, s{sCH}, 12", f"s_add_u32 s{sT0}, s{sT0}, s{sSTB}", f"s_add_u32 s{sCH}, s{sCH}, 1",
                    f"s_cmp_eq_u32 s{sCH}, 7", f"s_cselect_b32 s{sCH}, 0, s{sCH}"]
        def store_ops(acc, S, pk=False):
            ops = []
            for p in range(nstore):
                b = acc + 8*p
                if pk: ops += [f"v_pk_mul_f32 {vr(b+k,2)}, {vr(b+k,2)}, {vr(vL,2)} op_sel:[0,{p//2}] op_sel_hi:[1,{p//2}]" for k in range(0, 8, 2)]
                else: ops += [f"v_mul_f32 v{b+k}, v{vL+p//2}, v{b+k}" for k in range(8)]
                ops += [f"v_cvt_pk_bf16_f32 v{S+4*p+k}, v{b+2*k}, v{b+2*k+1}" for k in range(4)]
                if not cfg.nostore: ops += [f"buffer_store_dwordx4 {vr(S+4*p,4)}, v{vSO}, {sr(sWS)}, s{sT0} offen offset:{p*1024} {cfg.st_flags}"]
            return ops
        e(f".p2align 3\nLA_op{sfx}:")
        g0 = 0 if nq == 2 else 2
        lo, _ = emit_block(e, cfg, "oA", opA, PO, opB, PO, "oB", fixed={62: flag_op(nstore+1)}, streams=[[(o, g0) for o in store_ops(ACC0, STG0)]],
                   scal=[0] + store_sal() + flag_sal(True), barrier=(f"s_cmp_lt_u32 s{sCNT}, 2", f"LA_nb1{sfx}"))
        assert not lo[0]
        fx = {49: adr(f"s{sDELTA}")[:2], 50: adr(f"s{sDELTA}")[2:], 62: flag_op(nstore+1),
              54: [f"s_sub_u32 s{sDELTA}, 0, s{sDELTA}"], 56: [f"s_sub_u32 s{sCNT}, s{sCNT}, 1"], 58: [f"s_cmp_lg_u32 s{sCNT}, 0"]}
        lo, _ = emit_block(e, cfg, "oB", opB, PO, opA, PO, "oA", fixed=fx, streams=[[(o, g0) for o in store_ops(ACC1, STG1)]],
                   scal=[0] + store_sal() + flag_sal(), barrier=(f"s_cmp_lt_u32 s{sCNT}, 3", f"LA_nb2{sfx}"))
        assert not lo[0]
        assert e.q == q_entry
        e(f"s_cbranch_scc1 LA_op{sfx}")
        for o in store_sal() + store_ops(ACC0, STG0, pk=True) + flag_sal() + flag_op(nstore+1) + flag_sal() + flag_op(1): e(o)
        if cfg.stamps:
            stamp()
            e("s_waitcnt vmcnt(0)")
            stamp()
            n = nst[0]
            for i in range(16): e(f"v_mov_b32 v{i}, s{72+i}" if (i % 8) < n else f"v_mov_b32 v{i}, 0")
            e("v_mov_b32 v7, s98")
            e(f"s_lshl_b32 s{sT0}, s2, 3\ns_add_u32 s{sT0}, s{sT0}, s{sWAVE}\ns_lshl_b32 s{sT0}, s{sT0}, 6\ns_add_u32 s{sT0}, s{sT0}, 0x8000000")
            e(f"v_mov_b32 v16, 0\ns_mov_b64 exec, 1")
            for i in range(4): e(f"buffer_store_dwordx4 v[{4*i}:{4*i+3}], v16, {sr(sWS)}, s{sT0} offen offset:{16*i}")
        e("s_endpgm")
        cold.append((nq, attention, q_att, q_join))
    cold = []
    compute(2)
    if cfg.w3:
        e(".p2align 6\nLA_c1:")
        compute(1)
    e("LA_endoftext:")
    for nq, attention, q_att, q_join in cold:
        sfx = str(nq)
        e(f"LA_redo{sfx}:\ns_waitcnt lgkmcnt(0)\ns_barrier\ns_add_u32 s{sMODE}, s{sMODE}, 1\ns_branch LA_crestart")
        e(f"LA_gen{sfx}:")
        e(f"""v_mbcnt_lo_u32_b32 v{vMX}, -1, 0
v_mbcnt_hi_u32_b32 v{vMX}, -1, v{vMX}
s_lshl_b32 s{sT0}, s{sWAVE}, 9
s_add_u32 s{sT0}, s{sT0}, {LDS_NEG}
v_lshl_add_u32 v{vMX}, v{vMX}, 3, s{sT0}
ds_read_b64 {vr(vNEG,2)}, v{vMX}
s_waitcnt lgkmcnt(0)
v_mov_b32 v{vMX}, 0xff800000
v_mov_b32 v{vMX+1}, 0xff800000
s_cmp_eq_u32 s{sMODE}, 2
s_cbranch_scc1 LA_gen2{sfx}
v_mov_b64 {vr(vNEG,2)}, 0""")
        e(f"LA_gen2{sfx}:")
        e.q = list(q_att)
        GEN[0] = True
        attention("g")
        GEN[0] = False
        assert e.q == q_join
        t = SA + 8
        e(f"""v_mov_b32 v{t}, v{vMX}
v_mov_b32 v{t+1}, v{vMX+1}
s_nop 1
v_permlane32_swap_b32 v{t}, v{vMX}
v_permlane32_swap_b32 v{t+1}, v{vMX+1}
v_max_f32 v{vMX}, v{vMX}, v{t}
v_max_f32 v{vMX+1}, v{vMX+1}, v{t+1}
v_mov_b32 v{t}, v{vMX}
v_mov_b32 v{t+1}, v{vMX+1}
s_nop 1
v_permlane16_swap_b32 v{t}, v{vMX}
v_permlane16_swap_b32 v{t+1}, v{vMX+1}
v_max_f32 v{vMX}, v{vMX}, v{t}
v_max_f32 v{vMX+1}, v{vMX+1}, v{t+1}
v_sub_f32 v{vMX}, 0, v{vMX}
v_sub_f32 v{vMX+1}, 0, v{vMX+1}
v_mbcnt_hi_u32_b32 v{t}, -1, v{SA+2}
s_lshl_b32 s{sT0}, s{sWAVE}, 9
s_add_u32 s{sT0}, s{sT0}, {LDS_NEG}
v_lshl_add_u32 v{t}, v{t}, 3, s{sT0}
ds_write_b64 v{t}, {vr(vMX,2)}
s_waitcnt lgkmcnt(0)
s_branch LA_join{sfx}""")
    kd = f""".amdhsa_kernel {KA}
  .amdhsa_next_free_vgpr 256
  .amdhsa_next_free_sgpr 100
  .amdhsa_accum_offset 256
  .amdhsa_group_segment_fixed_size 0
  .amdhsa_kernarg_size 64
  .amdhsa_user_sgpr_count 2
  .amdhsa_user_sgpr_kernarg_segment_ptr 1
  .amdhsa_system_sgpr_workgroup_id_x 1
.end_amdhsa_kernel
"""
    return hdr + "\n" + "\n".join(e.L) + '\n.section .rodata,"a"\n.p2align 6\n' + kd

if __name__ == "__main__":
    cfg = Cfg()
    for a in sys.argv[2:]:
        k, v = a.split("=")
        cur = getattr(cfg, k)
        setattr(cfg, k, type(cur)(eval(v)) if not isinstance(cur, str) else v.replace("+", " "))
    open(sys.argv[1], "w").write(gen(cfg))
```

```python
import sys, math, struct

def f2u(x): return struct.unpack("<I", struct.pack("<f", x))[0]

class Cfg:
    nt_kv = True
    st_flags = "sc0 sc1"
    ld_flags = "sc0 sc1"
    out_flags = ""
    stamps = False
    prio_c = 3
    prio_h = 0
    formal = True
    fstride = 4352
    sleep = 8
    flag_unit = 30
    rotq = 2
    w3 = True
    nokv = False
    nowait = False
    noreduce = False
    T = 30
    spf = 0
    dloc = 0
    loc_flags = ''
    wb = 0
    spf_first = 3
    spf_per = 8
    spf_start = 1
    spf_after = True
    nowo = False
    hst = False
    half0 = True
    pre1 = 8
    nopf = False
    lastbar = 44
    force = False
    convA = 2
    convC = 3
    rb = 16
    nostore = False
    early_rd = True

ST = 1056; HALF = 16896; PAIR = 33792
XBASE = 3 * PAIR; XT = HALF
OBIAS = PAIR - 32768
LDS_BYTES = 163840
C_SCALE = math.log2(math.e) / 16.0
FLAGBASE = 0x2000000
LDS_FLAG = 152064
LDS_NEG = 152320
sMODE = 97; sRDY = 49
vNEG = 252; vMX = 254

O0 = 0; Q0 = 128; SA = 192; SB = 208; F0 = 224
vAK = 248; vAV = 249; vL = 250
vT0 = 252; vT1 = 253; vT2 = 254; vT3 = 255
ACC0 = 192; ACC1 = 0; STG0 = 32; STG1 = 48
vAO = 64
vSO = 68; vFOFF = 69; vONE = 70; vRD = 71
sX, sK, sV, sWQ, sWO, sWS, sOUT = 20, 24, 28, 32, 36, 40, 92
sWAVE, sB, sH, sHALF, sTBL = 44, 45, 46, 47, 48
sC = 68
sT0, sT1, sT2, sT3 = 50, 51, 52, 53
sCNT = 54; sDELTA = 55; sIDX = 56; sD2 = 57; sSTB = 58; sCH = 59
sLK, sLV, sLO = 60, 61, 62
sWOFF, sXOFF, sKVOFF, sOOFF = 63, 64, 65, 66
sROTO = 67; sG = 96
sSTAMP = 70

def vr(a, n): return f"v[{a}:{a+n-1}]"
def sr(a, n=4): return f"s[{a}:{a+n-1}]"

class Em:
    def __init__(self):
        self.L = []; self.q = []
    def __call__(self, s):
        for l in s.split("\n"):
            self.L.append("    " + l if not l.endswith(":") else l)
    def ds(self, s, tag):
        self(s); self.q.append(tag)
    def wait(self, tags):
        idx = -1
        for i, t in enumerate(self.q):
            if t in tags: idx = i
        if idx < 0: return False
        nn = min(len(self.q) - 1 - idx, 15)
        self(f"s_waitcnt lgkmcnt({nn})")
        self.q = self.q[len(self.q)-nn:] if nn else []
        return True
    def waitall(self):
        self("s_waitcnt lgkmcnt(0)"); self.q = []

class U:
    def __init__(self, mf, loads, extra=()):
        self.mf, self.loads, self.extra = mf, loads, tuple(extra)

def kload(off): return [lambda f, o=off: f"ds_read_b128 {vr(f,4)}, v{vAK} offset:{o}"]
def trload(a, o0, o1):
    return [lambda f, o=o0: f"ds_read_b64_tr_b16 {vr(f,2)}, v{a} offset:{o}",
            lambda f, o=o1: f"ds_read_b64_tr_b16 {vr(f+2,2)}, v{a} offset:{o}"]
def oreg(qt, dt): return O0 + 64*qt + 4*dt
def qreg(qt, ks): return Q0 + 32*qt + 4*ks

def u_qk(Y, base, nq, ksmajor=False):
    order = [(kt, ks) for ks in range(8) for kt in range(2)] if ksmajor else [(kt, ks) for kt in range(2) for ks in range(8)]
    return [U([(vr(Y+8*qt+4*kt,4), vr(qreg(qt,ks),4), "0" if ks == 0 else vr(Y+8*qt+4*kt,4)) for qt in range(nq)],
              kload(base + kt*512 + ks*64)) for kt, ks in order]
def u_pv(X, base, nq, first=False):
    return [U([(vr(oreg(qt,dt),4), vr(X+8*qt,4), "0" if first else vr(oreg(qt,dt),4)) for qt in range(nq)],
              trload(vAV, base + HALF + dt*32, base + HALF + 512 + dt*32)) for dt in range(16)]
def u_qp(nq, dtmajor=False):
    order = [(a, dt) for dt in range(16) for a in range(2)] if dtmajor else [(a, dt) for a in range(2) for dt in range(16)]
    return [U([(vr(oreg(qt,dt),4), vr(SB+4*(2*a+qt),4), vr(oreg(qt,dt),4)) for qt in range(nq)],
              trload(vAV, a*HALF + dt*32, a*HALF + 512 + dt*32), extra=[f"x{2*a+qt}" for qt in range(nq)]) for a, dt in order]
def u_op(acc, base, nq):
    return [U([(vr(acc+16*qt+4*nt,4), vr(qreg(qt,ks),4), "0" if ks == 0 else vr(acc+16*qt+4*nt,4)) for qt in range(nq)],
              trload(vAO+nt, base + ks*4096, base + ks*4096 + 2048)) for ks in range(8) for nt in range(4)]

def is_scalar(op): return isinstance(op, str) and (op.startswith("s_") or op.endswith(":"))
def cost(op):
    if isinstance(op, tuple): return 1
    if op.startswith("v_exp") or op.startswith("v_rcp"): return 2
    return 1

FB6 = [F0 + 4*i for i in range(6)]
class Plan:
    def __init__(self, n, kind, bufs):
        self.n, self.kind, self.bufs = n, kind, bufs
        if kind == 6:
            self.pre = 5
            self.seq = ([0,1,2,3,4]*4 + [0,1,2,3,4,5]*2) if n == 32 else ([0,1,2,3,4]*2 + [0,1,2,3,4,5])
        else:
            self.pre = 6
            self.seq = [m % 8 for m in range(n)]
    def reg(self, m): return self.bufs[self.seq[m]]

def emit_block(e, cfg, name, us, plan, nxt, nplan, nxtname, fixed=None, streams=(), barrier=True, post=None, scal=(), force=None):
    n = len(us); G = 2*n
    two = len(us[0].mf) == 2
    D = {g: [] for g in range(G)}; V = {g: [] for g in range(G)}; S = {g: [] for g in range(G)}
    for g, ops in (fixed or {}).items():
        for op in ops:
            (D if isinstance(op, tuple) else S if is_scalar(op) and not V[g] and not op.startswith("s_nop") and not op.startswith("s_waitcnt") else V)[g].append(op)
    def rd(u, pl, m, nm): return [(ld(pl.reg(m)), (nm, m)) for ld in u.loads]
    if plan.kind == 6:
        ig = {m: (m-5 if m <= n-8 else m-6) for m in range(n)} if n == 32 else {m: m-5 for m in range(n)}
        if n == 16: ig[15] = 9
        for m in range(plan.pre, n):
            r = rd(us[m], plan, m, name); g = 2*ig[m] + 1
            if n == 32 and m == n-7:
                gs = cfg_extra_gaps if len(r) == 2 else [g]
                for it, gg in zip(r, gs): D[gg].append(it)
                continue
            if len(D[g]) + len(r) > 2: g += 1
            D[g] += r
        bar = G - 9
    else:
        rs = [it for m in range(plan.pre, n) for it in rd(us[m], plan, m, name)]
        per = len(us[0].loads)
        assert per == 2
        k = 0; acc_from = 36
        for g in range(1, G):
            cap = 2 if (g >= acc_from and g % 2 == 1) else 1
            while cap and k < len(rs):
                m = rs[k][1][1]
                if g < 2*(m-8) + 1: break
                D[g].append(rs[k]); k += 1; cap -= 1
            if k == len(rs): last = g; break
        bar = last + 4
    if nxt is not None:
        rs = (post or []) + [it for m in range(nplan.pre) for it in rd(nxt[m], nplan, m, nxtname)]
        busy = {}
        for m in range(n): busy[plan.reg(m)] = 2*m + 1
        g = bar + 1; left = len(rs)
        for it in rs:
            fr = busy.get(nplan.reg(it[1][1]), -1) if isinstance(it[1], tuple) else -1
            while True:
                room = 2 - len(D[g]) - sum(cost(o) for o in V[g])
                want2 = left > (G - g - (1 if D[g] else 0))
                if g >= fr and (g == G-1 or (room > 0 and (not D[g] or want2))): break
                g += 1
            D[g].append(it); left -= 1
    left_over = []
    for st in streams:
        g = 0; k = 0
        while k < len(st) and g < G:
            op, eg = st[k]
            room = 2 - len(D[g]) - sum(cost(o) for o in V[g])
            if g >= eg and room >= cost(op): V[g].append(op); k += 1
            else: g += 1
        left_over.append(st[k:])
    for g, ops in (force or {}).items(): V[g] += ops
    if scal:
        g = scal[0]
        for op in scal[1:]:
            while g % 2 == 1 or S[g]: g += 1
            S[g].append(op)
    def put(g, wait=None):
        for op in S[g]: e(op)
        if wait: e.wait(wait)
        for it in D[g]: e.ds(*it)
        for op in V[g]: e(op)
        if g == bar and barrier:
            if cfg.formal: e.waitall()
            if barrier is True: e("s_barrier")
            else:
                e(barrier[0]); e(f"s_cbranch_scc1 {barrier[1]}"); e("s_barrier"); e(f"{barrier[1]}:")
    e.wait({(name, 0)} | set(us[0].extra))
    for m in range(n):
        u = us[m]; A = vr(plan.reg(m), 4)
        w = ({(name, m+1)} | set(us[m+1].extra)) if m + 1 < n else (({(nxtname, 0)} | set(nxt[0].extra)) if nxt is not None else None)
        d, b, c = u.mf[0]
        e(f"v_mfma_f32_16x16x32_bf16 {d}, {A}, {b}, {c}")
        put(2*m)
        if two:
            d, b, c = u.mf[1]
            e(f"v_mfma_f32_16x16x32_bf16 {d}, {A}, {b}, {c}")
        elif V[2*m] and V[2*m][-1].startswith(("v_exp", "v_rcp")): e("s_nop 0")
        put(2*m+1, w)
    return left_over, bar
cfg_extra_gaps = [17, 19]

def rename(e, old, new):
    e.q = [((new, t[1]) if isinstance(t, tuple) and t[0] == old else t) for t in e.q]

def elems(nq):
    o = [(0,0),(0,1),(0,2),(0,3),(1,0),(1,1),(1,2),(1,3),(0,4),(0,5),(0,6),(0,7),(1,4),(1,5),(1,6),(1,7)]
    return [x if x[0] < nq else None for x in o]
GEN = [False]
def sm_exp(S, el):
    if el is None: return []
    r = S + 8*el[0] + el[1]
    pre = [f"v_max_f32 v{vMX+el[0]}, v{vMX+el[0]}, v{r}", f"v_add_f32 v{r}, v{vNEG+el[0]}, v{r}"] if GEN[0] else []
    return pre + [f"v_exp_f32 v{r}, v{r}"]
def sm_post(S, el):
    if el is None: return []
    r = S + 8*el[0]
    o = [f"v_add_f32 v{vL+el[0]}, v{vL+el[0]}, v{r+el[1]}"]
    if el[1] % 2: o.append(f"v_cvt_pk_bf16_f32 v{r+el[1]//2}, v{r+el[1]-1}, v{r+el[1]}")
    return o
SM0 = 14
def sm_tail(fill, Y, nq):
    el = elems(nq)
    for u in range(SM0, 32):
        k = u - SM0
        fill.setdefault(2*u, []).extend(sm_exp(Y, el[k//2]) if k % 2 == 0 else sm_post(Y, el[k//2]))
def sm_head_list(X, nq):
    el = elems(nq); r = []
    for u in range(32, SM0 + 32):
        k = u - SM0
        r.append(sm_exp(X, el[k//2]) if k % 2 == 0 else sm_post(X, el[k//2]))
    return r
def sm_head(fill, X, nq):
    for u, ops in enumerate(sm_head_list(X, nq)): fill.setdefault(2*u, []).extend(ops)

def spread(fill, ops, gaps, per):
    i = 0
    for g in gaps:
        for _ in range(per):
            if i < len(ops): fill.setdefault(g, []).append(ops[i]); i += 1
    return ops[i:]

def gen(cfg):
    e = Em()
    KA = "standalone__mha_block_cached__near_ridge_kernel"
    hdr = f"""; fused MHA block: Q projection + attention + output projection + cross-workgroup head reduction
; @launch grid=(256,1,1) block=(512,1,1) lds={LDS_BYTES}
.amdgcn_target "amdgcn-amd-amdhsa--gfx950"
.text
.globl {KA}
.p2align 8
.type {KA},@function
{KA}:"""
    nst = [0]
    def stamp():
        if not cfg.stamps: return
        i = nst[0]; nst[0] += 1
        e(f"s_memrealtime s[{sSTAMP}:{sSTAMP+1}]\ns_memtime s[90:91]\ns_waitcnt lgkmcnt(0)\ns_mov_b32 s{72+i}, s{sSTAMP}\ns_mov_b32 s{80+i}, s90")
        e.q = []
    if cfg.stamps: e("s_memrealtime s[98:99]")
    e("s_cmp_ge_u32 s2, 256\ns_cbranch_scc1 LA_end")
    e("s_load_dwordx16 s[4:19], s[0:1], 0")
    e(f"v_lshrrev_b32 v1, 6, v0\nv_and_b32 v0, 63, v0\nv_readfirstlane_b32 s{sWAVE}, v1")
    if not cfg.nopf:
        e(f"s_getpc_b64 s[68:69]\nLA_pc:\ns_cmp_ge_u32 s{sWAVE}, 4\ns_cbranch_scc1 LA_nopf")
        e(f"""s_and_b32 s{sT0}, s2, 0xf8
s_add_u32 s{sT0}, s{sT0}, s{sWAVE}
s_lshl_b32 s{sT0}, s{sT0}, 7
s_add_u32 s{sT0}, s{sT0}, 60-(LA_pc-{KA})
s_min_u32 s{sT0}, s{sT0}, LA_endoftext-LA_pc-520
s_load_dwordx2 s[88:89], s[68:69], s{sT0}
s_add_u32 s{sT0}, s{sT0}, 512
s_load_dwordx2 s[88:89], s[68:69], s{sT0}""")
        e("LA_nopf:")
    e(f"""s_and_b32 s{sT0}, s2, 7
s_lshr_b32 s{sT1}, s2, 3
s_and_b32 s{sHALF}, s{sT1}, 1
s_lshr_b32 s{sT1}, s{sT1}, 1
s_lshr_b32 s{sT2}, s{sT1}, 2
s_and_b32 s{sT3}, s{sT1}, 3
s_lshr_b32 s{sB}, s{sT0}, 2
s_lshl_b32 s{sB}, s{sB}, 2
s_add_u32 s{sB}, s{sB}, s{sT2}
s_and_b32 s{sH}, s{sT0}, 3
s_lshl_b32 s{sH}, s{sH}, 2
s_add_u32 s{sH}, s{sH}, s{sT3}
s_lshl_b32 s{sROTO}, s{sT2}, 1
s_add_u32 s{sROTO}, s{sROTO}, s{sHALF}
s_lshl_b32 s{sG}, s{sB}, 1
s_add_u32 s{sG}, s{sG}, s{sHALF}""")
    R = cfg.rotq
    if R == 7:
        tb = [[(r + n) % 7 for n in range(7)] for r in range(7)]
        e(f"s_lshl_b32 s{sT0}, s{sT3}, 1\ns_add_u32 s{sT0}, s{sT0}, s{sROTO}\ns_sub_u32 s{sT1}, s{sT0}, 7\ns_cmp_ge_u32 s{sT0}, 7\ns_cselect_b32 s{sT0}, s{sT1}, s{sT0}")
    else:
        tb = []
        for r in range(R):
            o = []; base = 0
            while base < 7:
                w = min(R, 7 - base)
                o += [base + (r + n) % w for n in range(w)]; base += w
            tb.append(o)
        assert R in (1, 2, 4)
        e(f"s_add_u32 s{sT0}, s{sT3}, s{sROTO}\ns_and_b32 s{sT0}, s{sT0}, {R-1}")
    pk = [sum(c << (4*n) for n, c in enumerate(o)) for o in tb]
    e(f"s_mov_b32 s{sTBL}, {hex(pk[0])}")
    for r in range(1, len(pk)): e(f"s_cmp_eq_u32 s{sT0}, {r}\ns_cselect_b32 s{sTBL}, {hex(pk[r])}, s{sTBL}")
    e(f"s_cmp_eq_u32 s{sROTO}, 7\ns_cselect_b32 s{sROTO}, 0, s{sROTO}")
    def srds(lst):
        tab = {sX:(4,1605632), sWQ:(10,3670016), sK:(6,67108864), sV:(8,67108864), sWO:(12,3670016), sWS:(18,268435456), sOUT:(14,1605632)}
        for srd in lst:
            p, nb = tab[srd]
            e(f"s_mov_b32 s{srd}, s{p}\ns_mov_b32 s{srd+1}, s{p+1}\ns_mov_b32 s{srd+2}, {nb}\ns_mov_b32 s{srd+3}, 0x20000")
    e(f"s_mov_b32 s{sMODE}, 0\ns_cmp_lt_u32 s{sWAVE}, 4\ns_cbranch_scc1 LA_compute")

    if cfg.prio_h: e(f"s_setprio {cfg.prio_h}")
    vKV, vW, vXX, vO = 2, 3, 4, 5
    e(f"s_sub_u32 s{sWAVE}, s{sWAVE}, 4")
    e("LA_hrestart:")
    e(f"""v_lshrrev_b32 v8, 3, v0
v_mul_u32_u24 v{vXX}, {16*896}, v8
v_and_b32 v9, 7, v0
v_lshl_add_u32 v{vXX}, v9, 4, v{vXX}
v_cmp_eq_u32 vcc, 7, v8
v_mov_b32 v10, 0x70000000
v_lshrrev_b32 v6, 5, v0
v_cndmask_b32 v{vXX}, v{vXX}, v10, vcc
v_and_b32 v7, 31, v0
v_lshlrev_b32 v7, 4, v7
v_lshl_add_u32 v{vW}, v6, 15, v7""")
    e(f"""s_mul_i32 s{sLV}, s{sWAVE}, {4*ST}
s_lshl_b32 s{sWOFF}, s{sH}, 9
s_lshl_b32 s{sT0}, s{sWAVE}, 16
s_add_u32 s{sWOFF}, s{sWOFF}, s{sT0}
s_mul_i32 s{sXOFF}, s{sG}, 112
s_lshl_b32 s{sT0}, s{sWAVE}, 2
s_add_u32 s{sXOFF}, s{sXOFF}, s{sT0}
s_mul_i32 s{sXOFF}, s{sXOFF}, 896""")
    def dma(srd, voff, sreg, simm, mreg, mimm, nt=False):
        e(f"s_add_u32 m0, s{mreg}, {mimm}\ns_add_u32 s{sT0}, s{sreg}, {simm}\nbuffer_load_dwordx4 v{voff}, {sr(srd)}, s{sT0} offen {'nt ' if nt else ''}lds")
    def adv_ch():
        e(f"s_add_u32 s{sCH}, s{sCH}, 1\ns_cmp_eq_u32 s{sCH}, 7\ns_cselect_b32 s{sCH}, 0, s{sCH}")
    def koff(j): return j*1024 + 16*((j & 1) + 4*(j >> 1))
    def issue(n, kvbase=0):
        if n <= 6:
            sl = (n + 2) % 3
            e(f"s_bfe_u32 s{sCH}, s{sTBL}, {hex(0x30000 | (4*n))}")
            e(f"s_lshl_b32 s{sT1}, s{sCH}, 7\ns_add_u32 s{sT1}, s{sT1}, s{sXOFF}\ns_lshl_b32 s{sT2}, s{sCH}, 19\ns_add_u32 s{sT2}, s{sT2}, s{sWOFF}")
            for j in range(4): dma(sX, vXX, sT1, j*896, sLV, XBASE + sl*XT + j*ST)
            for a in range(2):
                for j in range(4): dma(sWQ, vW, sT2, (32*a + j)*8192, sLV, sl*PAIR + a*HALF + j*ST)
            return 12
        sl = (n + 1) % 4
        if n <= 39:
            i = n - 8; c = 0
            if cfg.nokv and n > 10: return 0
            if i + 1 <= 31:
                for j in range(4): dma(sK, vKV, sKVOFF, (i+1-kvbase)*16384 + j*512, sLV, sl*PAIR + koff(j), cfg.nt_kv)
                c += 4
            if i >= 0:
                for j in range(4): dma(sV, vKV, sKVOFF, (i-kvbase)*16384 + j*512, sLV, sl*PAIR + HALF + j*ST, cfg.nt_kv)
                c += 4
            return c
        if cfg.nowo: return 0
        e(f"s_lshl_b32 s{sT1}, s{sCH}, 7\ns_add_u32 s{sT1}, s{sT1}, s{sOOFF}")
        for j in range(8): dma(sWO, vO, sT1, j*8*896, sLO, sl*PAIR + (0 if sl % 2 else OBIAS) + j*1024)
        adv_ch()
        return 8
    assert 4*ST == 4096 + 128
    out = []
    def do_issue(n, kvbase=0): out.append((n, issue(n, kvbase)))
    def wait_step(n):
        while out and out[0][0] <= n: out.pop(0)
        e(f"s_waitcnt vmcnt({sum(c for _, c in out)})")
    e("s_waitcnt lgkmcnt(0)")
    srds([sX, sWQ])
    def parts(n):
        sv = e.L; e.L = []
        issue(n)
        L = e.L; e.L = sv
        r = []; cur = []
        for l in L:
            cur.append(l)
            if "buffer_load" in l: r.append(cur); cur = []
        return r
    p0, p1 = parts(0), None
    for x in p0: e.L += x
    srds([sK, sV, sWO, sWS, sOUT])
    p1 = parts(1)
    if cfg.half0:
        for x in p1[:4]: e.L += x
        e("s_waitcnt vmcnt(8)\ns_barrier")
        for x in p1[4:cfg.pre1]: e.L += x
    else:
        for x in p1[:cfg.pre1]: e.L += x
    e(f"s_waitcnt vmcnt({cfg.pre1})\ns_barrier")
    for x in p1[cfg.pre1:]: e.L += x
    out.append((1, 12))
    do_issue(2)
    e(f"""v_lshl_add_u32 v{vKV}, v6, 13, v7
v_mul_u32_u24 v{vO}, 896, v8
v_bfe_u32 v8, v0, 4, 2
v_lshlrev_b32 v8, 1, v8
v_xor_b32 v8, v8, v9
v_lshl_add_u32 v{vO}, v8, 4, v{vO}
s_lshl_b32 s{sLO}, s{sWAVE}, 13
s_lshl_b32 s{sKVOFF}, s{sB}, 4
s_add_u32 s{sKVOFF}, s{sKVOFF}, s{sH}
s_lshl_b32 s{sKVOFF}, s{sKVOFF}, 19
s_lshl_b32 s{sT0}, s{sWAVE}, 11
s_add_u32 s{sKVOFF}, s{sKVOFF}, s{sT0}
s_lshl_b32 s{sOOFF}, s{sH}, 8
s_lshl_b32 s{sT0}, s{sWAVE}, 6
s_add_u32 s{sOOFF}, s{sOOFF}, s{sT0}
s_mul_i32 s{sOOFF}, s{sOOFF}, 896""")
    sPK, sPV, sPO, sPR, sPB64 = 72, 74, 76, 77, 78
    if cfg.spf:
        i0 = cfg.spf_first
        e(f"""s_lshl_b32 s{sT0}, s{sB}, 4
s_add_u32 s{sT0}, s{sT0}, s{sH}
s_lshl_b32 s{sT0}, s{sT0}, 19
s_add_u32 s{sT1}, s{sT0}, {i0*16384 + 60}
s_add_u32 s{sPV}, s8, s{sT1}
s_addc_u32 s{sPV+1}, s9, 0
s_add_u32 s{sT1}, s{sT0}, {(i0+2)*16384 + 60 - 32768}
s_add_u32 s{sPK}, s6, s{sT1}
s_addc_u32 s{sPK+1}, s7, 0
s_lshl_b32 s{sPO}, s{sHALF}, 2
s_add_u32 s{sPO}, s{sPO}, s{sWAVE}
s_mul_i32 s{sPO}, s{sPO}, 6144
s_mov_b32 s{sPR}, 0""")
    def spf():
        if not cfg.spf: return
        lab = f"LA_sp{len(e.L)}"
        e(f"s_cmp_ge_u32 s{sPR}, {48//cfg.spf}\ns_cbranch_scc1 {lab}")
        for k in range(cfg.spf):
            if k % 2 == 0:
                e(f"s_cmp_ge_u32 s{sPO}, 32768\ns_cselect_b64 s[{sPB64}:{sPB64+1}], s[{sPK}:{sPK+1}], s[{sPV}:{sPV+1}]")
            e(f"s_load_dwordx2 s[80:81], s[{sPB64}:{sPB64+1}], s{sPO}\ns_add_u32 s{sPO}, s{sPO}, 128")
        e(f"{lab}:")
        e(f"s_add_u32 s{sPR}, s{sPR}, 1\ns_cmp_lg_u32 s{sPR}, {cfg.spf_per}\ns_cbranch_scc1 {lab}b")
        e(f"""s_mov_b32 s{sPR}, 0
s_sub_u32 s{sPO}, s{sPO}, 6144
s_add_u32 s{sPV}, s{sPV}, {cfg.spf_per*16384}
s_addc_u32 s{sPV+1}, s{sPV+1}, 0
s_add_u32 s{sPK}, s{sPK}, {cfg.spf_per*16384}
s_addc_u32 s{sPK+1}, s{sPK+1}, 0""")
        e(f"{lab}b:")
    nblk = (29 - cfg.spf_first) // cfg.spf_per + 1
    nround = nblk * cfg.spf_per
    sched = {1:[3],2:[4],3:[5],4:[6],5:[7],6:[8],7:[9,10]}
    for n in range(1, 8):
        wait_step(n); e("s_barrier")
        if cfg.hst and n == 5: e("s_memrealtime s[82:83]")
        if n >= cfg.spf_start and not cfg.spf_after: spf()
        for s_ in sched.get(n, []): do_issue(s_)
        if n >= cfg.spf_start and cfg.spf_after: spf()
    e(f"s_mov_b32 s{sCNT}, 7")
    e("LA_hloop:")
    if cfg.hst: e(f"s_cmp_eq_u32 s{sCNT}, 5\ns_cbranch_scc0 LA_hs1\ns_memrealtime s[84:85]\nLA_hs1:")
    entry = [c for _, c in out]
    for n in range(8, 12):
        wait_step(n); e("s_barrier")
        if cfg.spf_after: do_issue(n+3)
        if cfg.spf:
            lim = nround - (8 - cfg.spf_start) - (n - 8)
            itmax = (lim + 3) // 4
            if itmax < 7:
                e(f"s_cmp_le_u32 s{sCNT}, {7 - itmax}\ns_cbranch_scc1 LA_ns{n}")
                spf(); e(f"LA_ns{n}:")
            else: spf()
        if not cfg.spf_after: do_issue(n+3)
    assert cfg.nokv or [c for _, c in out] == entry
    e(f"s_add_u32 s{sKVOFF}, s{sKVOFF}, {4*16384}\ns_sub_u32 s{sCNT}, s{sCNT}, 1\ns_cmp_lg_u32 s{sCNT}, 0\ns_cbranch_scc1 LA_hloop")
    out = [(s_ + 24, c) for s_, c in out]
    if cfg.hst: e("s_memrealtime s[86:87]")
    e(f"s_mov_b32 s{sCH}, s{sROTO}")
    e(f"s_lshl_b32 s{sT0}, s{sG}, 2\ns_load_dword s{sRDY}, s[16:17], s{sT0}")
    for n in range(36, cfg.lastbar + 1):
        if n == 40:
            e(f"s_waitcnt lgkmcnt(0)\ns_cmp_eq_u32 s{sRDY}, 0\ns_cbranch_scc1 LA_hn\nLA_hnret:")
        wait_step(n if n < cfg.lastbar else 46)
        e("s_barrier")
        if cfg.hst and n == 40: e("s_memrealtime s[88:89]")
        if n == 41: e(f"v_mov_b32 v12, {LDS_FLAG}\nds_read_b128 v[16:19], v12")
        if n + 3 <= 46: do_issue(n+3, kvbase=28)
        if n == 41:
            e("s_waitcnt lgkmcnt(0)\nv_or3_b32 v16, v16, v17, v18\nv_or_b32 v16, v16, v19\nv_cmp_ne_u32 vcc, 0, v16\ns_cbranch_vccnz LA_hredo")
    e(f"s_cmp_ge_u32 s{sH}, {0 if cfg.noreduce else 14}\ns_cbranch_scc1 LA_end")
    hw = sT2
    sPB, sFB, sOB, sJ, sTO = sXOFF, sKVOFF, sOOFF, sCNT, sDELTA
    e(f"""s_lshr_b32 s{hw}, s{sH}, 2
s_lshl_b32 s{sPB}, s{sG}, 6
s_add_u32 s{sPB}, s{sPB}, s{hw}
s_mul_i32 s{sPB}, s{sPB}, {28*1024}
s_bfe_u32 s{sT0}, s{sH}, 0x10001
s_lshl_b32 s{sT0}, s{sT0}, 11
s_add_u32 s{sPB}, s{sPB}, s{sT0}
s_and_b32 s{sT0}, s{sH}, 1
s_lshl_b32 s{sT0}, s{sT0}, 7
s_add_u32 s{sPB}, s{sPB}, s{sT0}
s_mul_i32 s{sFB}, s{sG}, 28
s_add_u32 s{sFB}, s{sFB}, s{hw}
s_mul_i32 s{sFB}, s{sFB}, {cfg.fstride}
s_add_u32 s{sFB}, s{sFB}, {FLAGBASE}
s_mul_i32 s{sOB}, s{sG}, 112
s_lshl_b32 s{sT0}, s{sH}, 3
s_add_u32 s{sOB}, s{sOB}, s{sT0}
s_mul_i32 s{sOB}, s{sOB}, 896
s_mov_b32 s{sJ}, s{sWAVE}
v_lshrrev_b32 v8, 3, v0
v_and_b32 v9, 7, v0
v_lshlrev_b32 v2, 8, v8
v_lshl_add_u32 v2, v9, 4, v2
v_mul_u32_u24 v3, 896, v9
v_lshrrev_b32 v10, 5, v0
v_lshl_add_u32 v3, v10, 6, v3
v_and_b32 v8, 3, v8
v_lshl_add_u32 v3, v8, 3, v3
v_mov_b32 v4, 0""")
    e("LA_rloop:")
    e(f"""s_add_u32 s{sCH}, s{sROTO}, s{sJ}
s_sub_u32 s{sT0}, s{sCH}, 7
s_cmp_ge_u32 s{sCH}, 7
s_cselect_b32 s{sCH}, s{sT0}, s{sCH}
s_mul_i32 s{sT1}, s{sCH}, {4*cfg.fstride}
s_add_u32 s{sT1}, s{sT1}, s{sFB}
s_mov_b32 s{sTO}, 30000
s_mov_b64 exec, 1""")
    if cfg.stamps: e("s_memrealtime s[76:77]")
    e("LA_poll:")
    e(f"""v_mov_b32 v84, 0
s_sub_u32 s{sTO}, s{sTO}, 1
buffer_atomic_add v84, v4, {sr(sWS)}, s{sT1} offen sc0 sc1
s_waitcnt vmcnt(0)
v_cmp_ne_u32 vcc, 16, v84
s_cbranch_vccz LA_go
s_sleep {cfg.sleep}
s_cmp_lg_u32 s{sTO}, 0
s_cbranch_scc1 LA_poll""")
    e("LA_go:")
    e("s_mov_b64 exec, -1")
    if cfg.stamps: e("s_memrealtime s[78:79]")
    e(f"s_lshl_b32 s{sT0}, s{sCH}, 12\ns_add_u32 s{sT0}, s{sT0}, s{sPB}")
    for h in range(16):
        if cfg.rb < 16 and h and h % cfg.rb == 0:
            e(f"s_cmp_ge_u32 s{sJ}, 4\ns_cbranch_scc1 LA_rb{h}\ns_waitcnt vmcnt(0)\nLA_rb{h}:")
        e(f"buffer_load_dwordx4 {vr(16+4*h,4)}, v2, {sr(sWS)}, s{sT0} offen {cfg.ld_flags}")
        if h < 15: e(f"s_add_u32 s{sT0}, s{sT0}, {4*28*1024}")
    for h in range(16):
        e(f"s_waitcnt vmcnt({15-h})")
        for k in range(4):
            r = 16 + 4*h + k
            if h == 0:
                e(f"v_lshlrev_b32 v{8+2*k}, 16, v{r}\nv_and_b32 v{9+2*k}, 0xffff0000, v{r}")
            else:
                e(f"v_lshlrev_b32 v5, 16, v{r}\nv_and_b32 v6, 0xffff0000, v{r}\nv_add_f32 v{8+2*k}, v{8+2*k}, v5\nv_add_f32 v{9+2*k}, v{9+2*k}, v6")
    if cfg.stamps: e("s_memrealtime s[80:81]")
    for k in range(4): e(f"v_cvt_pk_bf16_f32 v{80+k}, v{8+2*k}, v{9+2*k}")
    e(f"s_lshl_b32 s{sT0}, s{sCH}, 7\ns_add_u32 s{sT0}, s{sT0}, s{sOB}")
    e(f"buffer_store_dwordx2 v[80:81], v3, {sr(sOUT)}, s{sT0} offen {cfg.out_flags}")
    e(f"buffer_store_dwordx2 v[82:83], v3, {sr(sOUT)}, s{sT0} offen offset:32 {cfg.out_flags}")
    e(f"s_add_u32 s{sJ}, s{sJ}, 4\ns_cmp_lt_u32 s{sJ}, 7\ns_cbranch_scc1 LA_rloop")
    if cfg.stamps:
        e(f"s_waitcnt vmcnt(0) lgkmcnt(0)")
        e(f"v_mov_b32 v0, s76\nv_mov_b32 v1, s78\nv_mov_b32 v2, s{sTO}\nv_mov_b32 v3, s80\nv_mov_b32 v8, 0")
        if cfg.hst: e("v_mov_b32 v0, s82\nv_mov_b32 v1, s84\nv_mov_b32 v2, s86\nv_mov_b32 v3, s88")
        e(f"s_lshl_b32 s{sT0}, s2, 2\ns_add_u32 s{sT0}, s{sT0}, s{sWAVE}\ns_lshl_b32 s{sT0}, s{sT0}, 4\ns_add_u32 s{sT0}, s{sT0}, 0x8100000\ns_mov_b64 exec, 1")
        e(f"buffer_store_dwordx4 v[0:3], v8, {sr(sWS)}, s{sT0} offen")
    e("LA_end:\ns_endpgm")
    e("LA_hredo:\ns_waitcnt vmcnt(0)\ns_barrier\ns_branch LA_hrestart")
    e("LA_hn:")
    e(f"s_lshl_b32 s{sT0}, s{sG}, 2\nv_mov_b32 v12, s{sT0}\ns_mov_b32 s{sT1}, 30000")
    e("LA_hn1:")
    e(f"""global_load_dword v13, v12, s[16:17] sc0 sc1
s_sub_u32 s{sT1}, s{sT1}, 1
s_waitcnt vmcnt(0)
v_cmp_eq_u32 vcc, 0, v13
s_cbranch_vccz LA_hnret
s_cmp_lg_u32 s{sT1}, 0
s_cbranch_scc1 LA_hn1
s_branch LA_hnret""")

    e(".p2align 6\nLA_compute:")
    if cfg.prio_c: e(f"s_setprio {cfg.prio_c}")
    stamp()
    e("LA_crestart:")
    t = SA
    ln = vT3
    e(f"v_mbcnt_lo_u32_b32 v{ln}, -1, 0\nv_mbcnt_hi_u32_b32 v{ln}, -1, v{ln}\ns_mov_b32 s{sC}, {hex(f2u(C_SCALE))}")
    e(f"""v_lshrrev_b32 v{t}, 4, v{ln}
v_and_b32 v{t+1}, 15, v{ln}
v_lshrrev_b32 v{t+2}, 2, v{ln}
v_and_b32 v{t+3}, 3, v{ln}
v_mul_u32_u24 v{vT0}, {ST}, v{t+2}
v_lshl_add_u32 v{vT0}, v{t+3}, 3, v{vT0}
v_add_u32 v{vAV}, {2*PAIR}, v{vT0}
v_mul_u32_u24 v{vAK}, {ST}, v{t+1}
v_lshl_add_u32 v{vAK}, v{t}, 4, v{vAK}
s_lshl_b32 s{sT0}, s{sWAVE}, 8
s_add_u32 s{sT0}, s{sT0}, {XBASE + 2*XT}
v_add_u32 v{vAK}, s{sT0}, v{vAK}
v_lshrrev_b32 v{t+4}, 1, v{t+1}
v_and_b32 v{t+5}, 1, v{ln}
v_lshl_add_u32 v{t+4}, v{t+4}, 2, v{t+5}
v_bfe_u32 v{t+5}, v{ln}, 4, 1
v_lshl_add_u32 v{t+4}, v{t+5}, 1, v{t+4}
v_lshrrev_b32 v{t+5}, 5, v{ln}
v_add_u32 v{t+4}, v{t+4}, v{t+5}
v_lshlrev_b32 v{vT1}, 10, v{t+1}
v_lshl_add_u32 v{vT1}, v{t+4}, 4, v{vT1}""")
    e("s_waitcnt lgkmcnt(0)")
    srds([sWS])
    e(f"s_or_b32 s{sT0}, s{sWAVE}, s{sH}\ns_or_b32 s{sT0}, s{sT0}, s{sMODE}\ns_cmp_lg_u32 s{sT0}, 0\ns_cbranch_scc1 LA_noinit")
    e(f"s_mul_i32 s{sT0}, s{sG}, {28*cfg.fstride}\ns_add_u32 s{sT0}, s{sT0}, {FLAGBASE}")
    e(f"v_mul_u32_u24 v{Q0}, {cfg.fstride}, v{ln}\nv_mov_b32 v{Q0+1}, 0\ns_mov_b64 exec, 0xfffffff")
    e(f"buffer_store_dword v{Q0+1}, v{Q0}, {sr(sWS)}, s{sT0} offen sc0 sc1\ns_mov_b64 exec, -1")
    e("LA_noinit:")
    for i in range(0, 128, 2): e(f"v_mov_b64 {vr(i,2)}, 0")
    e(f"v_mov_b64 {vr(vL,2)}, 0")
    e(f"s_mov_b32 s{sCNT}, 6\ns_mov_b32 s{sIDX}, 2")
    if cfg.w3: e(f"s_cmp_eq_u32 s{sWAVE}, 3\ns_cbranch_scc1 LA_c1")
    nst0 = nst[0]

    def compute(nq):
        global vAO
        sfx = str(nq)
        nst[0] = nst0
        e.q = []
        P32 = Plan(32, 6, FB6); P16 = Plan(16, 6, FB6)
        PQ = Plan(32, 8, FB6 + [SA, SA+4])
        PO = Plan(32, 8, FB6 + [72, 76])
        if cfg.half0: e(f"s_branch LA_b0{sfx}\nLA_hb{sfx}:\ns_barrier\ns_branch LA_nh{sfx}\nLA_b0{sfx}:")
        e("s_barrier")
        stamp()
        qp = u_qp(nq)
        def xload(i): return (f"ds_read_b128 {vr(SB+4*i,4)}, v{vAK} offset:{(i & 1)*128 + (i >> 1)*64}", f"x{i}")
        x0 = [xload(i) for i in range(nq)]; x1 = [xload(2+i) for i in range(nq)]
        for it in x0: e.ds(*it)
        for mm in range(PQ.pre):
            for ld in qp[mm].loads: e.ds(ld(PQ.reg(mm)), ("qp", mm))
        e.wait({("qp", 0)})
        ent = list(e.q)
        e(f".p2align 3\nLA_qp{sfx}:")
        scal = [20, f"s_add_u32 s{sIDX}, s{sIDX}, 1", f"s_cmp_eq_u32 s{sIDX}, 3", f"s_cselect_b32 s{sIDX}, 0, s{sIDX}", f"s_cselect_b32 s{sDELTA}, -2, 1",
                f"s_mul_i32 s{sD2}, s{sDELTA}, {XT}", f"s_mul_i32 s{sDELTA}, s{sDELTA}, {PAIR}", f"s_sub_u32 s{sCNT}, s{sCNT}, 1", f"s_cmp_lg_u32 s{sCNT}, 0"]
        fx = {6: [x1[0]], 49: [f"v_add_u32 v{vAV}, s{sDELTA}, v{vAV}", f"v_add_u32 v{vAK}, s{sD2}, v{vAK}"]}
        if nq == 2: fx[10] = [x1[1]]
        if cfg.half0:
            fx[16] = [f"s_cmp_eq_u32 s{sCNT}, 6"]
            fx[18] = [f"s_cbranch_scc1 LA_hb{sfx}", f"LA_nh{sfx}:"]
        sv = list(e.L)
        _, bar = emit_block(e, cfg, "qp", qp, PQ, qp, PQ, "qpn", fixed=fx, post=x0, scal=scal)
        assert bar == 51, bar
        rename(e, "qpn", "qp"); steady = list(e.q)
        assert steady == ent[len(ent)-len(steady):] , (steady, ent)
        e.L, e.q = sv, list(ent)
        emit_block(e, cfg, "qp", qp, PQ, qp, PQ, "qpn", fixed=fx, post=x0, scal=scal)
        rename(e, "qpn", "qp"); assert e.q == steady
        e(f"s_cbranch_scc1 LA_qp{sfx}")
        allu = {(a, dt): qp[a*16+dt] for a in range(2) for dt in range(16)}
        order = [(0, dt) for dt in range(6)]
        for dt in range(16):
            order.append((1, dt))
            if dt + 6 < 16: order.append((0, dt+6))
        ql = [allu[k] for k in order]
        fin = {dt: order.index((1, dt)) for dt in range(16)}
        def qconv(ks, pk=False):
            ops = []
            for qt in range(nq):
                b = oreg(qt, 2*ks); q = qreg(qt, ks)
                if pk: ops += [f"v_pk_mul_f32 {vr(b+k,2)}, {vr(b+k,2)}, {sr(sC,2)} op_sel_hi:[1,0]" for k in range(0, 8, 2)]
                else: ops += [f"v_mul_f32 v{b+k}, s{sC}, v{b+k}" for k in range(8)]
                ops += [f"v_cvt_pk_bf16_f32 v{q+k}, v{b+2*k}, v{b+2*k+1}" for k in range(4)]
            return ops
        def qswap(ks):
            return [f"v_permlane16_swap_b32 v{qreg(qt,ks)+k}, v{qreg(qt,ks)+k+2}" for qt in range(nq) for k in range(2)]
        dly = 6 if nq == 2 else 10
        NA = cfg.convA if nq == 2 else 4
        NC = cfg.convC if nq == 2 else 3
        st = []
        for ks in range(NA):
            st += [(op, 2*fin[2*ks+1] + dly) for op in qconv(ks)]
            if ks: st += [(op, 0) for op in qswap(ks-1)]
        fx = {2: [x1[0]], 49: [f"v_mov_b32 v{vAK}, v{vT1}", f"v_mov_b32 v{vAV}, v{vT0}"]}
        if nq == 2: fx[4] = [x1[1]]
        qk0 = u_qk(SA + 0, 0, nq, ksmajor=True)
        lo, _ = emit_block(e, cfg, "qp", ql, PQ, qk0, P16, "qk0", fixed=fx, streams=[st])
        if cfg.stamps: stamp()
        if nq == 2:
            e(f"s_or_b32 s{sT0}, s{sWAVE}, s{sH}\ns_cmp_lg_u32 s{sT0}, 0\ns_cbranch_scc1 LA_noinit2")
            e(f"s_lshl_b32 s{sT0}, s{sG}, 2\nv_mov_b32 v{vT2}, s{sT0}\nv_mov_b32 v{vT3}, 1\ns_mov_b64 exec, 1\ns_waitcnt vmcnt(0)")
            e(f"global_store_dword v{vT2}, v{vT3}, s[16:17] sc0 sc1\ns_mov_b64 exec, -1")
            e("LA_noinit2:")
        for op, _ in lo[0]: e(op)
        if nq == 1: e("s_nop 3")
        for ks in range(NA, 8):
            ops = qconv(ks, pk=True)
            if ks >= 8 - NC: ops = [o for o in ops if "pk_mul" in o]
            for op in ops: e(op)
            if ks < 8 - NC or ks == 8 - NC:
                for op in qswap(ks-1): e(op)
        st = []
        for ks in range(8 - NC, 8):
            st += [(o, 0) for o in qconv(ks) if "cvt" in o]
            st += [("s_nop 0", 0)] * (1 if nq == 2 else 2) + [(o, 0) for o in qswap(ks)]
        e("s_nop 1")
        st8 = u_qk(SB, PAIR, nq) + u_pv(SA, PAIR, nq, first=True)
        lo, _ = emit_block(e, cfg, "qk0", qk0, P16, st8, P32, "m", streams=[st])
        assert not lo[0]
        pvl = u_pv(SB, 0, nq)
        t = SA
        q_att = list(e.q)
        def attention(tag):
            el = elems(nq)
            st = []
            for k in range(17):
                if k < 16: st += [(o, 4 if nq == 2 else 8) for o in sm_exp(SA, el[k])]
                if k: st += [(o, 0) for o in sm_post(SA, el[k-1])]
            pre = st[:0]
            fx = {}; sm_tail(fx, SB, nq)
            g = 4 if nq == 2 else 8
            per = (len(st) + (29 - g)) // (30 - g)
            for k in range(0, len(st), per):
                fx[g] = [o for o, _ in st[k:k+per]] + fx.get(g, []); g += 1
            assert g <= 30
            fx.setdefault(53, []).extend([f"v_add_u32 v{vAK}, {2*PAIR}, v{vAK}", f"v_add_u32 v{vAV}, {2*PAIR}, v{vAV}"])
            lA = u_qk(SA, 0, nq) + u_pv(SB, 0, nq)
            lB = u_qk(SB, PAIR, nq) + u_pv(SA, PAIR, nq)
            emit_block(e, cfg, "m", st8, P32, lA, P32, "mA", fixed=fx, scal=[40, f"s_mov_b32 s{sCNT}, 15", f"s_mov_b32 s{sDELTA}, {(-2*PAIR) & 0xffffffff}"])
            q_entry = list(e.q)
            e(f".p2align 3\nLA_main{sfx}{tag}:")
            fx = {}; sm_head(fx, SB, nq); sm_tail(fx, SA, nq)
            emit_block(e, cfg, "mA", lA, P32, lB, P32, "mB", fixed=fx)
            fx = {}; sm_head(fx, SA, nq); sm_tail(fx, SB, nq)
            fx.setdefault(53, []).extend([f"v_add_u32 v{vAK}, s{sDELTA}, v{vAK}", f"v_add_u32 v{vAV}, s{sDELTA}, v{vAV}"])
            emit_block(e, cfg, "mB", lB, P32, lA, P32, "mA", fixed=fx,
                       scal=[56, f"s_sub_u32 s{sDELTA}, 0, s{sDELTA}", f"s_sub_u32 s{sCNT}, s{sCNT}, 1", f"s_cmp_lg_u32 s{sCNT}, 0"])
            assert e.q == q_entry, (e.q, q_entry)
            e(f"s_cbranch_scc1 LA_main{sfx}{tag}")
            if not tag: stamp()
            else: e.q = [] if cfg.stamps else e.q
            if tag and cfg.stamps: e('s_waitcnt lgkmcnt(0)')
            rename(e, "mA", "junk")
            pvl = u_pv(SB, 0, nq)
            for mm in range(5):
                for ld in pvl[mm].loads: e.ds(ld(P16.reg(mm)), ("pvl", mm))
            hl = sm_head_list(SB, nq)
            ex = [o for k_, ops in enumerate(hl) for o in ops if k_ % 2 == 0]; ot = [o for k_, ops in enumerate(hl) for o in ops if k_ % 2 == 1]
            for o in ex: e(o)
            t = SA
            e(f"v_mbcnt_lo_u32_b32 v{t+2}, -1, 0")
            for o in ot: e(o)
        e(f"s_cmp_lg_u32 s{sMODE}, 0\ns_cbranch_scc1 LA_gen{sfx}")
        attention("")
        q_join = list(e.q)
        e(f"LA_join{sfx}:")
        e(f"v_mbcnt_hi_u32_b32 v{t+2}, -1, v{t+2}\nv_lshrrev_b32 v{t+3}, 2, v{t+2}")
        misc = f"""v_lshlrev_b32 v{t+3}, 7, v{t+3}
v_bfe_u32 v{t+4}, v{t+2}, 3, 2
v_lshl_add_u32 v{t+3}, v{t+4}, 5, v{t+3}
v_and_b32 v{t+4}, 3, v{t+2}
v_lshl_add_u32 v{t+3}, v{t+4}, 3, v{t+3}
v_add_u32 v{vT0}, {OBIAS}, v{t+3}
v_xor_b32 v{vT1}, 32, v{vT0}
v_xor_b32 v{vT2}, 64, v{vT0}
v_xor_b32 v{vT3}, 0x60, v{vT0}""".split("\n")
        def ocvt(ks): return [f"v_cvt_pk_bf16_f32 v{qreg(qt,ks)+k}, v{oreg(qt,2*ks)+2*k}, v{oreg(qt,2*ks)+2*k+1}" for qt in range(nq) for k in range(4)]
        st = [(o, 0) for o in misc] + [(o, 2*(2*ks+1) + dly) for ks in range(8) for o in ocvt(ks)]
        vAO = vT0
        op0 = u_op(ACC0, 32768, nq)
        lo, _ = emit_block(e, cfg, "pvl", pvl, P16, op0, PO, "o0", streams=[st])
        stamp()
        sFL = sD2; sCHF = sIDX
        opA = u_op(ACC1, 0, nq); opB = u_op(ACC0, 32768, nq)
        sal = f"""s_lshl_b32 s{sT1}, s{sG}, 2
s_lshl_b32 s{sT0}, s{sG}, 4
s_add_u32 s{sT0}, s{sT0}, s{sH}
s_lshl_b32 s{sT0}, s{sT0}, 2
s_add_u32 s{sT0}, s{sT0}, s{sWAVE}
s_mul_i32 s{sSTB}, s{sT0}, {28*1024}
s_mov_b32 s{sCH}, s{sROTO}
s_mul_i32 s{sFL}, s{sG}, 28
s_add_u32 s{sFL}, s{sFL}, s{sWAVE}
s_mul_i32 s{sFL}, s{sFL}, {cfg.fstride}
s_add_u32 s{sFL}, s{sFL}, {FLAGBASE}
s_mov_b32 s{sCHF}, s{sROTO}
s_mov_b32 s{sCNT}, 3
s_mov_b32 s{sDELTA}, {(-2*PAIR) & 0xffffffff}""".split("\n")
        a, b2 = 64, 65
        lo_t, hi_t = hex(f2u(2.0**-cfg.T)), hex(f2u(2.0**cfg.T))
        lred = f"""v_mov_b32 v{a}, v{vL}
v_mov_b32 v{b2}, v{vL+1}
v_mbcnt_lo_u32_b32 v{vSO}, -1, 0
v_mbcnt_hi_u32_b32 v{vSO}, -1, v{vSO}
v_permlane32_swap_b32 v{a}, v{vL}
v_permlane32_swap_b32 v{b2}, v{vL+1}
v_add_f32 v{vL}, v{vL}, v{a}
v_add_f32 v{vL+1}, v{vL+1}, v{b2}
v_mov_b32 v{a}, v{vL}
v_mov_b32 v{b2}, v{vL+1}
v_mov_b32 v{vONE}, {hi_t}
v_mov_b32 v{vRD}, s{sT1}
v_permlane16_swap_b32 v{a}, v{vL}
v_permlane16_swap_b32 v{b2}, v{vL+1}
v_add_f32 v{vL}, v{vL}, v{a}
v_add_f32 v{vL+1}, v{vL+1}, v{b2}""".split("\n")
        if nq == 1: lred = [o for o in lred if f"v{b2}" not in o.replace(f"v{b2}0", "")] ; lred.insert(3, "s_nop 0"); lred.insert(9, "s_nop 0")
        chk = [f"v_med3_f32 v{a}, v{vL}, s{sT2}, v{vONE}", f"v_cmp_neq_f32 vcc, v{a}, v{vL}"]
        if nq == 2: chk = [chk[0], f"v_med3_f32 v{b2}, v{vL+1}, s{sT2}, v{vONE}", chk[1], f"v_cmp_neq_f32 s[{sLK}:{sLK+1}], v{b2}, v{vL+1}"]
        late = f"""v_min_u32 v{vFOFF}, 1, v{vSO}
v_mul_u32_u24 v{vFOFF}, 0x700000, v{vFOFF}
v_lshlrev_b32 v{vFOFF}, 8, v{vFOFF}
v_lshlrev_b32 v{vSO}, 4, v{vSO}
v_mov_b32 v{vONE}, 1
v_rcp_f32 v{vL}, v{vL}
v_rcp_f32 v{vL+1}, v{vL+1}""".split("\n")
        adr = lambda d: [f"v_add_u32 v{vAO+i}, {d}, v{vAO+i}" for i in range(4)]
        rem = [(o, 3 if nq == 2 else 6) for o, _ in lo[0]]
        fx = {49: adr(2*PAIR)[:2], 50: adr(2*PAIR)[2:]}
        extra = lred + chk
        dec = ([f"s_or_b64 vcc, vcc, s[{sLK}:{sLK+1}]"] if nq == 2 else []) + [f"s_cmp_lg_u64 vcc, 0", f"s_cselect_b32 s{sT3}, 1, {1 if cfg.force else 0}",
               f"s_cmp_eq_u32 s{sMODE}, 0", f"s_cselect_b32 s{sT3}, s{sT3}, s{sMODE}", f"s_and_b32 s{sT3}, s{sT3}, 1"]
        sal2 = [f"s_lshl_b32 s{sT1}, s{sWAVE}, 2", f"s_add_u32 s{sT1}, s{sT1}, {LDS_FLAG}", f"s_mov_b32 s{sT2}, {lo_t}"] + sal[1:]
        for k_, o in enumerate(dec): fx[34 + 2*k_] = [o]
        fx[46] = fx.get(46, []) + [f"v_mov_b32 v{a}, s{sT3}"]
        fx[48] = [(f"ds_write_b32 v{vRD}, v{a}", "fw"), f"v_mov_b32 v{b2}, {LDS_FLAG}"]
        lo, bar = emit_block(e, cfg, "o0", op0, PO, opA, PO, "oA", fixed=fx, streams=[rem + [(o, 52) for o in late]], scal=[0] + sal2,
                             force={8 + k_: [o] for k_, o in enumerate(extra)}, post=[(f"ds_read_b128 v[80:83], v{b2}", "fr")])
        assert bar == 51 and cfg.formal
        for o, _ in lo[0]:
            assert "cvt" not in o
            e(o)
        assert "fr" not in e.q
        e(f"v_or3_b32 v80, v80, v81, v82\nv_or_b32 v80, v80, v83\nv_cmp_ne_u32 vcc, 0, v80\ns_cbranch_vccnz LA_redo{sfx}")
        q_entry = list(e.q)
        nstore = 2*nq
        lid = [0]; alt = []
        if cfg.dloc == 1: e(f"s_lshr_b32 s{sT0}, s{sH}, 2\ns_cmp_eq_u32 s{sT0}, s{sWAVE}\ns_cselect_b64 vcc, -1, 0")
        if cfg.dloc == 2: e(f"s_mov_b64 vcc, -1")
        def flag_sal(first=False):
            if first:
                return [f"s_mul_i32 s{sT1}, s{sCHF}, {4*cfg.fstride}", f"s_add_u32 s{sT1}, s{sT1}, s{sFL}", f"s_add_u32 s{sT2}, s{sCHF}, 1",
                        f"s_cmp_eq_u32 s{sT2}, 7", f"s_cselect_b32 s{sT2}, 0, s{sT2}", f"s_cmp_eq_u32 s{sCNT}, 3",
                        f"s_cselect_b32 s{sT1}, 0x7ff00000, s{sT1}", f"s_cselect_b32 s{sCHF}, s{sCHF}, s{sT2}"]
            return [f"s_mul_i32 s{sT1}, s{sCHF}, {4*cfg.fstride}", f"s_add_u32 s{sT1}, s{sT1}, s{sFL}", f"s_add_u32 s{sCHF}, s{sCHF}, 1",
                    f"s_cmp_eq_u32 s{sCHF}, 7", f"s_cselect_b32 s{sCHF}, 0, s{sCHF}"]
        def flag_op(cnt): return [f"s_waitcnt vmcnt({20 if cfg.nowait else cnt})", f"buffer_atomic_add v{vONE}, v{vFOFF}, {sr(sWS)}, s{sT1} offen sc1"]
        def store_sal():
            return [f"s_lshl_b32 s{sT0}, s{sCH}, 12", f"s_add_u32 s{sT0}, s{sT0}, s{sSTB}", f"s_add_u32 s{sCH}, s{sCH}, 1",
                    f"s_cmp_eq_u32 s{sCH}, 7", f"s_cselect_b32 s{sCH}, 0, s{sCH}"]
        def store_ops(acc, S, pk=False):
            ops = []
            for p in range(nstore):
                b = acc + 8*p
                if pk: ops += [f"v_pk_mul_f32 {vr(b+k,2)}, {vr(b+k,2)}, {vr(vL,2)} op_sel:[0,{p//2}] op_sel_hi:[1,{p//2}]" for k in range(0, 8, 2)]
                else: ops += [f"v_mul_f32 v{b+k}, v{vL+p//2}, v{b+k}" for k in range(8)]
                ops += [f"v_cvt_pk_bf16_f32 v{S+4*p+k}, v{b+2*k}, v{b+2*k+1}" for k in range(4)]
                base = f"buffer_store_dwordx4 {vr(S+4*p,4)}, v{vSO}, {sr(sWS)}, s{sT0} offen offset:{p*1024} "
                if cfg.dloc:
                    lid[0] += 1; L_ = f"LA_st{sfx}_{lid[0]}"
                    ops += [f"s_cbranch_vccnz {L_}a\n{base}{cfg.st_flags}\n{L_}b:"]
                    alt.append(f"{L_}a:\n{base}{cfg.loc_flags}\ns_branch {L_}b")
                elif not cfg.nostore: ops += [base + cfg.st_flags]
            return ops
        e(f".p2align 3\nLA_op{sfx}:")
        g0 = 0 if nq == 2 else 2
        lo, _ = emit_block(e, cfg, "oA", opA, PO, opB, PO, "oB", fixed={62: flag_op(nstore+1)}, streams=[[(o, g0) for o in store_ops(ACC0, STG0)]],
                   scal=[0] + store_sal() + flag_sal(True), barrier=(f"s_cmp_lt_u32 s{sCNT}, {2 if cfg.lastbar < 46 else 1}", f"LA_nb1{sfx}"))
        assert not lo[0]
        fx = {49: adr(f"s{sDELTA}")[:2], 50: adr(f"s{sDELTA}")[2:], 62: flag_op(nstore+1),
              54: [f"s_sub_u32 s{sDELTA}, 0, s{sDELTA}"], 56: [f"s_sub_u32 s{sCNT}, s{sCNT}, 1"], 58: [f"s_cmp_lg_u32 s{sCNT}, 0"]}
        lo, _ = emit_block(e, cfg, "oB", opB, PO, opA, PO, "oA", fixed=fx, streams=[[(o, g0) for o in store_ops(ACC1, STG1)]],
                   scal=[0] + store_sal() + flag_sal(), barrier=(f"s_cmp_lt_u32 s{sCNT}, {3 if cfg.lastbar < 45 else 2}", f"LA_nb2{sfx}"))
        assert not lo[0]
        assert e.q == q_entry
        e(f"s_cbranch_scc1 LA_op{sfx}")
        for o in store_sal() + store_ops(ACC0, STG0, pk=True) + flag_sal() + flag_op(nstore+1) + flag_sal() + flag_op(1): e(o)
        if cfg.wb: e(f"s_cbranch_vccz LA_nwb{sfx}\nbuffer_wbl2 sc1\nLA_nwb{sfx}:")
        if cfg.stamps:
            stamp()
            e("s_waitcnt vmcnt(0)")
            stamp()
            n = nst[0]
            for i in range(16): e(f"v_mov_b32 v{i}, s{72+i}" if (i % 8) < n else f"v_mov_b32 v{i}, 0")
            e("v_mov_b32 v7, s98\ns_getreg_b32 s98, hwreg(HW_REG_XCC_ID)\nv_mov_b32 v15, s98")
            e(f"s_lshl_b32 s{sT0}, s2, 3\ns_add_u32 s{sT0}, s{sT0}, s{sWAVE}\ns_lshl_b32 s{sT0}, s{sT0}, 6\ns_add_u32 s{sT0}, s{sT0}, 0x8000000")
            e(f"v_mov_b32 v16, 0\ns_mov_b64 exec, 1")
            for i in range(4): e(f"buffer_store_dwordx4 v[{4*i}:{4*i+3}], v16, {sr(sWS)}, s{sT0} offen offset:{16*i}")
        e("s_endpgm")
        for a_ in alt: e(a_)
        cold.append((nq, attention, q_att, q_join))
    cold = []
    compute(2)
    if cfg.w3:
        e(".p2align 6\nLA_c1:")
        compute(1)
    e("LA_endoftext:")
    for nq, attention, q_att, q_join in cold:
        sfx = str(nq)
        e(f"LA_redo{sfx}:\ns_waitcnt lgkmcnt(0)\ns_barrier\ns_add_u32 s{sMODE}, s{sMODE}, 1\ns_branch LA_crestart")
        e(f"LA_gen{sfx}:")
        e(f"""v_mbcnt_lo_u32_b32 v{vMX}, -1, 0
v_mbcnt_hi_u32_b32 v{vMX}, -1, v{vMX}
s_lshl_b32 s{sT0}, s{sWAVE}, 9
s_add_u32 s{sT0}, s{sT0}, {LDS_NEG}
v_lshl_add_u32 v{vMX}, v{vMX}, 3, s{sT0}
ds_read_b64 {vr(vNEG,2)}, v{vMX}
s_waitcnt lgkmcnt(0)
v_mov_b32 v{vMX}, 0xff800000
v_mov_b32 v{vMX+1}, 0xff800000
s_cmp_eq_u32 s{sMODE}, 2
s_cbranch_scc1 LA_gen2{sfx}
v_mov_b64 {vr(vNEG,2)}, 0""")
        e(f"LA_gen2{sfx}:")
        e.q = list(q_att)
        GEN[0] = True
        attention("g")
        GEN[0] = False
        assert e.q == q_join
        t = SA + 8
        e(f"""v_mov_b32 v{t}, v{vMX}
v_mov_b32 v{t+1}, v{vMX+1}
s_nop 1
v_permlane32_swap_b32 v{t}, v{vMX}
v_permlane32_swap_b32 v{t+1}, v{vMX+1}
v_max_f32 v{vMX}, v{vMX}, v{t}
v_max_f32 v{vMX+1}, v{vMX+1}, v{t+1}
v_mov_b32 v{t}, v{vMX}
v_mov_b32 v{t+1}, v{vMX+1}
s_nop 1
v_permlane16_swap_b32 v{t}, v{vMX}
v_permlane16_swap_b32 v{t+1}, v{vMX+1}
v_max_f32 v{vMX}, v{vMX}, v{t}
v_max_f32 v{vMX+1}, v{vMX+1}, v{t+1}
v_sub_f32 v{vMX}, 0, v{vMX}
v_sub_f32 v{vMX+1}, 0, v{vMX+1}
v_mbcnt_hi_u32_b32 v{t}, -1, v{SA+2}
s_lshl_b32 s{sT0}, s{sWAVE}, 9
s_add_u32 s{sT0}, s{sT0}, {LDS_NEG}
v_lshl_add_u32 v{t}, v{t}, 3, s{sT0}
ds_write_b64 v{t}, {vr(vMX,2)}
s_waitcnt lgkmcnt(0)
s_branch LA_join{sfx}""")
    kd = f""".amdhsa_kernel {KA}
  .amdhsa_next_free_vgpr 256
  .amdhsa_next_free_sgpr 100
  .amdhsa_accum_offset 256
  .amdhsa_group_segment_fixed_size 0
  .amdhsa_kernarg_size 64
  .amdhsa_user_sgpr_count 2
  .amdhsa_user_sgpr_kernarg_segment_ptr 1
  .amdhsa_system_sgpr_workgroup_id_x 1
.end_amdhsa_kernel
"""
    return hdr + "\n" + "\n".join(e.L) + '\n.section .rodata,"a"\n.p2align 6\n' + kd

if __name__ == "__main__":
    cfg = Cfg()
    for a in sys.argv[2:]:
        k, v = a.split("=")
        cur = getattr(cfg, k)
        setattr(cfg, k, type(cur)(eval(v)) if not isinstance(cur, str) else v.replace("+", " "))
    open(sys.argv[1], "w").write(gen(cfg))
```

```python
import sys, math, struct

def f2u(x): return struct.unpack("<I", struct.pack("<f", x))[0]

class Cfg:
    nt_kv = True
    st_flags = "sc0 sc1"
    ld_flags = "sc0 sc1"
    out_flags = ""
    stamps = False
    prio_c = 3
    prio_h = 0
    formal = True
    fstride = 4352
    sleep = 8
    flag_unit = 30
    rotq = 2
    w3 = True
    nokv = False
    nowait = False
    noreduce = False
    T = 30
    nper = 56
    ticket = False
    cjoin = True
    nh = 56
    cont = True
    rev = False
    sleep2 = 2
    pkadd = True
    tkearly = 0
    spf = 0
    dloc = 0
    loc_flags = ''
    wb = 0
    spf_first = 3
    spf_per = 8
    spf_start = 1
    spf_after = True
    nowo = False
    hst = False
    half0 = True
    pre1 = 8
    nopf = False
    lastbar = 44
    force = False
    convA = 2
    convC = 3
    rb = 16
    nostore = False
    early_rd = True

ST = 1056; HALF = 16896; PAIR = 33792
XBASE = 3 * PAIR; XT = HALF
OBIAS = PAIR - 32768
LDS_BYTES = 163840
C_SCALE = math.log2(math.e) / 16.0
FLAGBASE = 0x2000000
LDS_FLAG = 152064
LDS_NEG = 152320
sMODE = 97; sRDY = 49
vNEG = 252; vMX = 254

O0 = 0; Q0 = 128; SA = 192; SB = 208; F0 = 224
vAK = 248; vAV = 249; vL = 250
vT0 = 252; vT1 = 253; vT2 = 254; vT3 = 255
ACC0 = 192; ACC1 = 0; STG0 = 32; STG1 = 48
vAO = 64
vSO = 68; vFOFF = 69; vONE = 70; vRD = 71
sX, sK, sV, sWQ, sWO, sWS, sOUT = 20, 24, 28, 32, 36, 40, 92
sWAVE, sB, sH, sHALF, sTBL = 44, 45, 46, 47, 48
sC = 68
sT0, sT1, sT2, sT3 = 50, 51, 52, 53
sCNT = 54; sDELTA = 55; sIDX = 56; sD2 = 57; sSTB = 58; sCH = 59
sLK, sLV, sLO = 60, 61, 62
sWOFF, sXOFF, sKVOFF, sOOFF = 63, 64, 65, 66
sROTO = 67; sG = 96
sSTAMP = 70

def vr(a, n): return f"v[{a}:{a+n-1}]"
def sr(a, n=4): return f"s[{a}:{a+n-1}]"

class Em:
    def __init__(self):
        self.L = []; self.q = []
    def __call__(self, s):
        for l in s.split("\n"):
            self.L.append("    " + l if not l.endswith(":") else l)
    def ds(self, s, tag):
        self(s); self.q.append(tag)
    def wait(self, tags):
        idx = -1
        for i, t in enumerate(self.q):
            if t in tags: idx = i
        if idx < 0: return False
        nn = min(len(self.q) - 1 - idx, 15)
        self(f"s_waitcnt lgkmcnt({nn})")
        self.q = self.q[len(self.q)-nn:] if nn else []
        return True
    def waitall(self):
        self("s_waitcnt lgkmcnt(0)"); self.q = []

class U:
    def __init__(self, mf, loads, extra=()):
        self.mf, self.loads, self.extra = mf, loads, tuple(extra)

def kload(off): return [lambda f, o=off: f"ds_read_b128 {vr(f,4)}, v{vAK} offset:{o}"]
def trload(a, o0, o1):
    return [lambda f, o=o0: f"ds_read_b64_tr_b16 {vr(f,2)}, v{a} offset:{o}",
            lambda f, o=o1: f"ds_read_b64_tr_b16 {vr(f+2,2)}, v{a} offset:{o}"]
def oreg(qt, dt): return O0 + 64*qt + 4*dt
def qreg(qt, ks): return Q0 + 32*qt + 4*ks

def u_qk(Y, base, nq, ksmajor=False):
    order = [(kt, ks) for ks in range(8) for kt in range(2)] if ksmajor else [(kt, ks) for kt in range(2) for ks in range(8)]
    return [U([(vr(Y+8*qt+4*kt,4), vr(qreg(qt,ks),4), "0" if ks == 0 else vr(Y+8*qt+4*kt,4)) for qt in range(nq)],
              kload(base + kt*512 + ks*64)) for kt, ks in order]
def u_pv(X, base, nq, first=False):
    return [U([(vr(oreg(qt,dt),4), vr(X+8*qt,4), "0" if first else vr(oreg(qt,dt),4)) for qt in range(nq)],
              trload(vAV, base + HALF + dt*32, base + HALF + 512 + dt*32)) for dt in range(16)]
def u_qp(nq, dtmajor=False):
    order = [(a, dt) for dt in range(16) for a in range(2)] if dtmajor else [(a, dt) for a in range(2) for dt in range(16)]
    return [U([(vr(oreg(qt,dt),4), vr(SB+4*(2*a+qt),4), vr(oreg(qt,dt),4)) for qt in range(nq)],
              trload(vAV, a*HALF + dt*32, a*HALF + 512 + dt*32), extra=[f"x{2*a+qt}" for qt in range(nq)]) for a, dt in order]
def u_op(acc, base, nq):
    return [U([(vr(acc+16*qt+4*nt,4), vr(qreg(qt,ks),4), "0" if ks == 0 else vr(acc+16*qt+4*nt,4)) for qt in range(nq)],
              trload(vAO+nt, base + ks*4096, base + ks*4096 + 2048)) for ks in range(8) for nt in range(4)]

def is_scalar(op): return isinstance(op, str) and (op.startswith("s_") or op.endswith(":"))
def cost(op):
    if isinstance(op, tuple): return 1
    if op.startswith("v_exp") or op.startswith("v_rcp"): return 2
    return 1

FB6 = [F0 + 4*i for i in range(6)]
class Plan:
    def __init__(self, n, kind, bufs):
        self.n, self.kind, self.bufs = n, kind, bufs
        if kind == 6:
            self.pre = 5
            self.seq = ([0,1,2,3,4]*4 + [0,1,2,3,4,5]*2) if n == 32 else ([0,1,2,3,4]*2 + [0,1,2,3,4,5])
        else:
            self.pre = 6
            self.seq = [m % 8 for m in range(n)]
    def reg(self, m): return self.bufs[self.seq[m]]

def emit_block(e, cfg, name, us, plan, nxt, nplan, nxtname, fixed=None, streams=(), barrier=True, post=None, scal=(), force=None):
    n = len(us); G = 2*n
    two = len(us[0].mf) == 2
    D = {g: [] for g in range(G)}; V = {g: [] for g in range(G)}; S = {g: [] for g in range(G)}
    for g, ops in (fixed or {}).items():
        for op in ops:
            (D if isinstance(op, tuple) else S if is_scalar(op) and not V[g] and not op.startswith("s_nop") and not op.startswith("s_waitcnt") else V)[g].append(op)
    def rd(u, pl, m, nm): return [(ld(pl.reg(m)), (nm, m)) for ld in u.loads]
    if plan.kind == 6:
        ig = {m: (m-5 if m <= n-8 else m-6) for m in range(n)} if n == 32 else {m: m-5 for m in range(n)}
        if n == 16: ig[15] = 9
        for m in range(plan.pre, n):
            r = rd(us[m], plan, m, name); g = 2*ig[m] + 1
            if n == 32 and m == n-7:
                gs = cfg_extra_gaps if len(r) == 2 else [g]
                for it, gg in zip(r, gs): D[gg].append(it)
                continue
            if len(D[g]) + len(r) > 2: g += 1
            D[g] += r
        bar = G - 9
    else:
        rs = [it for m in range(plan.pre, n) for it in rd(us[m], plan, m, name)]
        per = len(us[0].loads)
        assert per == 2
        k = 0; acc_from = 36
        for g in range(1, G):
            cap = 2 if (g >= acc_from and g % 2 == 1) else 1
            while cap and k < len(rs):
                m = rs[k][1][1]
                if g < 2*(m-8) + 1: break
                D[g].append(rs[k]); k += 1; cap -= 1
            if k == len(rs): last = g; break
        bar = last + 4
    if nxt is not None:
        rs = (post or []) + [it for m in range(nplan.pre) for it in rd(nxt[m], nplan, m, nxtname)]
        busy = {}
        for m in range(n): busy[plan.reg(m)] = 2*m + 1
        g = bar + 1; left = len(rs)
        for it in rs:
            fr = busy.get(nplan.reg(it[1][1]), -1) if isinstance(it[1], tuple) else -1
            while True:
                room = 2 - len(D[g]) - sum(cost(o) for o in V[g])
                want2 = left > (G - g - (1 if D[g] else 0))
                if g >= fr and (g == G-1 or (room > 0 and (not D[g] or want2))): break
                g += 1
            D[g].append(it); left -= 1
    left_over = []
    for st in streams:
        g = 0; k = 0
        while k < len(st) and g < G:
            op, eg = st[k]
            room = 2 - len(D[g]) - sum(cost(o) for o in V[g])
            if g >= eg and room >= cost(op): V[g].append(op); k += 1
            else: g += 1
        left_over.append(st[k:])
    for g, ops in (force or {}).items(): V[g] += ops
    if scal:
        g = scal[0]
        for op in scal[1:]:
            while g % 2 == 1 or S[g]: g += 1
            S[g].append(op)
    def put(g, wait=None):
        for op in S[g]: e(op)
        if wait: e.wait(wait)
        for it in D[g]: e.ds(*it)
        for op in V[g]: e(op)
        if g == bar and barrier:
            if cfg.formal: e.waitall()
            if barrier is True: e("s_barrier")
            else:
                e(barrier[0]); e(f"s_cbranch_scc1 {barrier[1]}"); e("s_barrier"); e(f"{barrier[1]}:")
    e.wait({(name, 0)} | set(us[0].extra))
    for m in range(n):
        u = us[m]; A = vr(plan.reg(m), 4)
        w = ({(name, m+1)} | set(us[m+1].extra)) if m + 1 < n else (({(nxtname, 0)} | set(nxt[0].extra)) if nxt is not None else None)
        d, b, c = u.mf[0]
        e(f"v_mfma_f32_16x16x32_bf16 {d}, {A}, {b}, {c}")
        put(2*m)
        if two:
            d, b, c = u.mf[1]
            e(f"v_mfma_f32_16x16x32_bf16 {d}, {A}, {b}, {c}")
        elif V[2*m] and V[2*m][-1].startswith(("v_exp", "v_rcp")): e("s_nop 0")
        put(2*m+1, w)
    return left_over, bar
cfg_extra_gaps = [17, 19]

def rename(e, old, new):
    e.q = [((new, t[1]) if isinstance(t, tuple) and t[0] == old else t) for t in e.q]

def elems(nq):
    o = [(0,0),(0,1),(0,2),(0,3),(1,0),(1,1),(1,2),(1,3),(0,4),(0,5),(0,6),(0,7),(1,4),(1,5),(1,6),(1,7)]
    return [x if x[0] < nq else None for x in o]
GEN = [False]
def sm_exp(S, el):
    if el is None: return []
    r = S + 8*el[0] + el[1]
    pre = [f"v_max_f32 v{vMX+el[0]}, v{vMX+el[0]}, v{r}", f"v_add_f32 v{r}, v{vNEG+el[0]}, v{r}"] if GEN[0] else []
    return pre + [f"v_exp_f32 v{r}, v{r}"]
def sm_post(S, el):
    if el is None: return []
    r = S + 8*el[0]
    o = [f"v_add_f32 v{vL+el[0]}, v{vL+el[0]}, v{r+el[1]}"]
    if el[1] % 2: o.append(f"v_cvt_pk_bf16_f32 v{r+el[1]//2}, v{r+el[1]-1}, v{r+el[1]}")
    return o
SM0 = 14
def sm_tail(fill, Y, nq):
    el = elems(nq)
    for u in range(SM0, 32):
        k = u - SM0
        fill.setdefault(2*u, []).extend(sm_exp(Y, el[k//2]) if k % 2 == 0 else sm_post(Y, el[k//2]))
def sm_head_list(X, nq):
    el = elems(nq); r = []
    for u in range(32, SM0 + 32):
        k = u - SM0
        r.append(sm_exp(X, el[k//2]) if k % 2 == 0 else sm_post(X, el[k//2]))
    return r
def sm_head(fill, X, nq):
    for u, ops in enumerate(sm_head_list(X, nq)): fill.setdefault(2*u, []).extend(ops)

def spread(fill, ops, gaps, per):
    i = 0
    for g in gaps:
        for _ in range(per):
            if i < len(ops): fill.setdefault(g, []).append(ops[i]); i += 1
    return ops[i:]

def gen(cfg):
    e = Em()
    KA = "standalone__mha_block_cached__near_ridge_kernel"
    hdr = f"""; fused MHA block: Q projection + attention + output projection + cross-workgroup head reduction
; @launch grid=(256,1,1) block=(512,1,1) lds={LDS_BYTES}
.amdgcn_target "amdgcn-amd-amdhsa--gfx950"
.text
.globl {KA}
.p2align 8
.type {KA},@function
{KA}:"""
    nst = [0]
    def stamp():
        if not cfg.stamps: return
        i = nst[0]; nst[0] += 1
        e(f"s_memrealtime s[{sSTAMP}:{sSTAMP+1}]\ns_memtime s[90:91]\ns_waitcnt lgkmcnt(0)\ns_mov_b32 s{72+i}, s{sSTAMP}\ns_mov_b32 s{80+i}, s90")
        e.q = []
    if cfg.stamps: e("s_memrealtime s[98:99]")
    e("s_cmp_ge_u32 s2, 256\ns_cbranch_scc1 LA_end")
    e("s_load_dwordx16 s[4:19], s[0:1], 0")
    e(f"v_lshrrev_b32 v1, 6, v0\nv_and_b32 v0, 63, v0\nv_readfirstlane_b32 s{sWAVE}, v1")
    if not cfg.nopf:
        e(f"s_getpc_b64 s[68:69]\nLA_pc:\ns_cmp_ge_u32 s{sWAVE}, 4\ns_cbranch_scc1 LA_nopf")
        e(f"""s_and_b32 s{sT0}, s2, 0xf8
s_add_u32 s{sT0}, s{sT0}, s{sWAVE}
s_lshl_b32 s{sT0}, s{sT0}, 7
s_add_u32 s{sT0}, s{sT0}, 60-(LA_pc-{KA})
s_min_u32 s{sT0}, s{sT0}, LA_endoftext-LA_pc-520
s_load_dwordx2 s[88:89], s[68:69], s{sT0}
s_add_u32 s{sT0}, s{sT0}, 512
s_load_dwordx2 s[88:89], s[68:69], s{sT0}""")
        e("LA_nopf:")
    e(f"""s_and_b32 s{sT0}, s2, 7
s_lshr_b32 s{sT1}, s2, 3
s_and_b32 s{sHALF}, s{sT1}, 1
s_lshr_b32 s{sT1}, s{sT1}, 1
s_lshr_b32 s{sT2}, s{sT1}, 2
s_and_b32 s{sT3}, s{sT1}, 3
s_lshr_b32 s{sB}, s{sT0}, 2
s_lshl_b32 s{sB}, s{sB}, 2
s_add_u32 s{sB}, s{sB}, s{sT2}
s_and_b32 s{sH}, s{sT0}, 3
s_lshl_b32 s{sH}, s{sH}, 2
s_add_u32 s{sH}, s{sH}, s{sT3}
s_lshl_b32 s{sROTO}, s{sT2}, 1
s_add_u32 s{sROTO}, s{sROTO}, s{sHALF}
s_lshl_b32 s{sG}, s{sB}, 1
s_add_u32 s{sG}, s{sG}, s{sHALF}""")
    R = cfg.rotq
    if R == 7:
        tb = [[(r + n) % 7 for n in range(7)] for r in range(7)]
        e(f"s_lshl_b32 s{sT0}, s{sT3}, 1\ns_add_u32 s{sT0}, s{sT0}, s{sROTO}\ns_sub_u32 s{sT1}, s{sT0}, 7\ns_cmp_ge_u32 s{sT0}, 7\ns_cselect_b32 s{sT0}, s{sT1}, s{sT0}")
    else:
        tb = []
        for r in range(R):
            o = []; base = 0
            while base < 7:
                w = min(R, 7 - base)
                o += [base + (r + n) % w for n in range(w)]; base += w
            tb.append(o)
        assert R in (1, 2, 4)
        e(f"s_add_u32 s{sT0}, s{sT3}, s{sROTO}\ns_and_b32 s{sT0}, s{sT0}, {R-1}")
    pk = [sum(c << (4*n) for n, c in enumerate(o)) for o in tb]
    e(f"s_mov_b32 s{sTBL}, {hex(pk[0])}")
    for r in range(1, len(pk)): e(f"s_cmp_eq_u32 s{sT0}, {r}\ns_cselect_b32 s{sTBL}, {hex(pk[r])}, s{sTBL}")
    e(f"s_cmp_eq_u32 s{sROTO}, 7\ns_cselect_b32 s{sROTO}, 0, s{sROTO}")
    def srds(lst):
        tab = {sX:(4,1605632), sWQ:(10,3670016), sK:(6,67108864), sV:(8,67108864), sWO:(12,3670016), sWS:(18,268435456), sOUT:(14,1605632)}
        for srd in lst:
            p, nb = tab[srd]
            e(f"s_mov_b32 s{srd}, s{p}\ns_mov_b32 s{srd+1}, s{p+1}\ns_mov_b32 s{srd+2}, {nb}\ns_mov_b32 s{srd+3}, 0x20000")
    e(f"s_mov_b32 s{sMODE}, 0\ns_cmp_lt_u32 s{sWAVE}, 4\ns_cbranch_scc1 LA_compute")

    if cfg.prio_h: e(f"s_setprio {cfg.prio_h}")
    vKV, vW, vXX, vO = 2, 3, 4, 5
    e(f"s_sub_u32 s{sWAVE}, s{sWAVE}, 4")
    e("LA_hrestart:")
    e(f"""v_lshrrev_b32 v8, 3, v0
v_mul_u32_u24 v{vXX}, {16*896}, v8
v_and_b32 v9, 7, v0
v_lshl_add_u32 v{vXX}, v9, 4, v{vXX}
v_cmp_eq_u32 vcc, 7, v8
v_mov_b32 v10, 0x70000000
v_lshrrev_b32 v6, 5, v0
v_cndmask_b32 v{vXX}, v{vXX}, v10, vcc
v_and_b32 v7, 31, v0
v_lshlrev_b32 v7, 4, v7
v_lshl_add_u32 v{vW}, v6, 15, v7""")
    e(f"""s_mul_i32 s{sLV}, s{sWAVE}, {4*ST}
s_lshl_b32 s{sWOFF}, s{sH}, 9
s_lshl_b32 s{sT0}, s{sWAVE}, 16
s_add_u32 s{sWOFF}, s{sWOFF}, s{sT0}
s_mul_i32 s{sXOFF}, s{sG}, 112
s_lshl_b32 s{sT0}, s{sWAVE}, 2
s_add_u32 s{sXOFF}, s{sXOFF}, s{sT0}
s_mul_i32 s{sXOFF}, s{sXOFF}, 896""")
    def dma(srd, voff, sreg, simm, mreg, mimm, nt=False):
        e(f"s_add_u32 m0, s{mreg}, {mimm}\ns_add_u32 s{sT0}, s{sreg}, {simm}\nbuffer_load_dwordx4 v{voff}, {sr(srd)}, s{sT0} offen {'nt ' if nt else ''}lds")
    def adv_ch():
        e(f"s_add_u32 s{sCH}, s{sCH}, 1\ns_cmp_eq_u32 s{sCH}, 7\ns_cselect_b32 s{sCH}, 0, s{sCH}")
    def koff(j): return j*1024 + 16*((j & 1) + 4*(j >> 1))
    def issue(n, kvbase=0):
        if n <= 6:
            sl = (n + 2) % 3
            e(f"s_bfe_u32 s{sCH}, s{sTBL}, {hex(0x30000 | (4*n))}")
            e(f"s_lshl_b32 s{sT1}, s{sCH}, 7\ns_add_u32 s{sT1}, s{sT1}, s{sXOFF}\ns_lshl_b32 s{sT2}, s{sCH}, 19\ns_add_u32 s{sT2}, s{sT2}, s{sWOFF}")
            for j in range(4): dma(sX, vXX, sT1, j*896, sLV, XBASE + sl*XT + j*ST)
            for a in range(2):
                for j in range(4): dma(sWQ, vW, sT2, (32*a + j)*8192, sLV, sl*PAIR + a*HALF + j*ST)
            return 12
        sl = (n + 1) % 4
        if n <= 39:
            i = n - 8; c = 0
            if cfg.nokv and n > 10: return 0
            if i + 1 <= 31:
                for j in range(4): dma(sK, vKV, sKVOFF, (i+1-kvbase)*16384 + j*512, sLV, sl*PAIR + koff(j), cfg.nt_kv)
                c += 4
            if i >= 0:
                for j in range(4): dma(sV, vKV, sKVOFF, (i-kvbase)*16384 + j*512, sLV, sl*PAIR + HALF + j*ST, cfg.nt_kv)
                c += 4
            return c
        if cfg.nowo: return 0
        e(f"s_lshl_b32 s{sT1}, s{sCH}, 7\ns_add_u32 s{sT1}, s{sT1}, s{sOOFF}")
        for j in range(8): dma(sWO, vO, sT1, j*8*896, sLO, sl*PAIR + (0 if sl % 2 else OBIAS) + j*1024)
        adv_ch()
        return 8
    assert 4*ST == 4096 + 128
    out = []
    def do_issue(n, kvbase=0): out.append((n, issue(n, kvbase)))
    def wait_step(n):
        while out and out[0][0] <= n: out.pop(0)
        e(f"s_waitcnt vmcnt({sum(c for _, c in out)})")
    e("s_waitcnt lgkmcnt(0)")
    srds([sX, sWQ])
    def parts(n):
        sv = e.L; e.L = []
        issue(n)
        L = e.L; e.L = sv
        r = []; cur = []
        for l in L:
            cur.append(l)
            if "buffer_load" in l: r.append(cur); cur = []
        return r
    p0, p1 = parts(0), None
    for x in p0: e.L += x
    srds([sK, sV, sWO, sWS, sOUT])
    p1 = parts(1)
    if cfg.half0:
        for x in p1[:4]: e.L += x
        e("s_waitcnt vmcnt(8)\ns_barrier")
        for x in p1[4:cfg.pre1]: e.L += x
    else:
        for x in p1[:cfg.pre1]: e.L += x
    e(f"s_waitcnt vmcnt({cfg.pre1})\ns_barrier")
    for x in p1[cfg.pre1:]: e.L += x
    out.append((1, 12))
    do_issue(2)
    e(f"""v_lshl_add_u32 v{vKV}, v6, 13, v7
v_mul_u32_u24 v{vO}, 896, v8
v_bfe_u32 v8, v0, 4, 2
v_lshlrev_b32 v8, 1, v8
v_xor_b32 v8, v8, v9
v_lshl_add_u32 v{vO}, v8, 4, v{vO}
s_lshl_b32 s{sLO}, s{sWAVE}, 13
s_lshl_b32 s{sKVOFF}, s{sB}, 4
s_add_u32 s{sKVOFF}, s{sKVOFF}, s{sH}
s_lshl_b32 s{sKVOFF}, s{sKVOFF}, 19
s_lshl_b32 s{sT0}, s{sWAVE}, 11
s_add_u32 s{sKVOFF}, s{sKVOFF}, s{sT0}
s_lshl_b32 s{sOOFF}, s{sH}, 8
s_lshl_b32 s{sT0}, s{sWAVE}, 6
s_add_u32 s{sOOFF}, s{sOOFF}, s{sT0}
s_mul_i32 s{sOOFF}, s{sOOFF}, 896""")
    sPK, sPV, sPO, sPR, sPB64 = 72, 74, 76, 77, 78
    if cfg.spf:
        i0 = cfg.spf_first
        e(f"""s_lshl_b32 s{sT0}, s{sB}, 4
s_add_u32 s{sT0}, s{sT0}, s{sH}
s_lshl_b32 s{sT0}, s{sT0}, 19
s_add_u32 s{sT1}, s{sT0}, {i0*16384 + 60}
s_add_u32 s{sPV}, s8, s{sT1}
s_addc_u32 s{sPV+1}, s9, 0
s_add_u32 s{sT1}, s{sT0}, {(i0+2)*16384 + 60 - 32768}
s_add_u32 s{sPK}, s6, s{sT1}
s_addc_u32 s{sPK+1}, s7, 0
s_lshl_b32 s{sPO}, s{sHALF}, 2
s_add_u32 s{sPO}, s{sPO}, s{sWAVE}
s_mul_i32 s{sPO}, s{sPO}, 6144
s_mov_b32 s{sPR}, 0""")
    def spf():
        if not cfg.spf: return
        lab = f"LA_sp{len(e.L)}"
        e(f"s_cmp_ge_u32 s{sPR}, {48//cfg.spf}\ns_cbranch_scc1 {lab}")
        for k in range(cfg.spf):
            if k % 2 == 0:
                e(f"s_cmp_ge_u32 s{sPO}, 32768\ns_cselect_b64 s[{sPB64}:{sPB64+1}], s[{sPK}:{sPK+1}], s[{sPV}:{sPV+1}]")
            e(f"s_load_dwordx2 s[80:81], s[{sPB64}:{sPB64+1}], s{sPO}\ns_add_u32 s{sPO}, s{sPO}, 128")
        e(f"{lab}:")
        e(f"s_add_u32 s{sPR}, s{sPR}, 1\ns_cmp_lg_u32 s{sPR}, {cfg.spf_per}\ns_cbranch_scc1 {lab}b")
        e(f"""s_mov_b32 s{sPR}, 0
s_sub_u32 s{sPO}, s{sPO}, 6144
s_add_u32 s{sPV}, s{sPV}, {cfg.spf_per*16384}
s_addc_u32 s{sPV+1}, s{sPV+1}, 0
s_add_u32 s{sPK}, s{sPK}, {cfg.spf_per*16384}
s_addc_u32 s{sPK+1}, s{sPK+1}, 0""")
        e(f"{lab}b:")
    nblk = (29 - cfg.spf_first) // cfg.spf_per + 1
    nround = nblk * cfg.spf_per
    sched = {1:[3],2:[4],3:[5],4:[6],5:[7],6:[8],7:[9,10]}
    for n in range(1, 8):
        wait_step(n); e("s_barrier")
        if cfg.hst and n == 5: e("s_memrealtime s[82:83]")
        if n >= cfg.spf_start and not cfg.spf_after: spf()
        for s_ in sched.get(n, []): do_issue(s_)
        if n >= cfg.spf_start and cfg.spf_after: spf()
    e(f"s_mov_b32 s{sCNT}, 7")
    e("LA_hloop:")
    if cfg.hst: e(f"s_cmp_eq_u32 s{sCNT}, 5\ns_cbranch_scc0 LA_hs1\ns_memrealtime s[84:85]\nLA_hs1:")
    entry = [c for _, c in out]
    for n in range(8, 12):
        wait_step(n); e("s_barrier")
        if cfg.spf_after: do_issue(n+3)
        if cfg.spf:
            lim = nround - (8 - cfg.spf_start) - (n - 8)
            itmax = (lim + 3) // 4
            if itmax < 7:
                e(f"s_cmp_le_u32 s{sCNT}, {7 - itmax}\ns_cbranch_scc1 LA_ns{n}")
                spf(); e(f"LA_ns{n}:")
            else: spf()
        if not cfg.spf_after: do_issue(n+3)
    assert cfg.nokv or [c for _, c in out] == entry
    e(f"s_add_u32 s{sKVOFF}, s{sKVOFF}, {4*16384}\ns_sub_u32 s{sCNT}, s{sCNT}, 1\ns_cmp_lg_u32 s{sCNT}, 0\ns_cbranch_scc1 LA_hloop")
    out = [(s_ + 24, c) for s_, c in out]
    if cfg.hst: e("s_memrealtime s[86:87]")
    e(f"s_mov_b32 s{sCH}, s{sROTO}")
    e(f"s_lshl_b32 s{sT0}, s{sG}, 2\ns_load_dword s{sRDY}, s[16:17], s{sT0}")
    for n in range(36, cfg.lastbar + 1):
        if n == 40:
            e(f"s_waitcnt lgkmcnt(0)\ns_cmp_eq_u32 s{sRDY}, 0\ns_cbranch_scc1 LA_hn\nLA_hnret:")
        wait_step(n if n < cfg.lastbar else 46)
        e("s_barrier")
        if cfg.hst and n == 40: e("s_memrealtime s[88:89]")
        if n == 41: e(f"v_mov_b32 v12, {LDS_FLAG}\nds_read_b128 v[16:19], v12")
        if n + 3 <= 46: do_issue(n+3, kvbase=28)
        if n == 41:
            e("s_waitcnt lgkmcnt(0)\nv_or3_b32 v16, v16, v17, v18\nv_or_b32 v16, v16, v19\nv_cmp_ne_u32 vcc, 0, v16\ns_cbranch_vccnz LA_hredo")
    if cfg.noreduce: e("s_branch LA_end")
    sPB, sFB, sOB, sJ, sTO, sGF, sOC = sXOFF, sKVOFF, sOOFF, sCNT, sDELTA, sWOFF, sIDX
    if cfg.ticket:
        e(f"""s_mul_i32 s{sT1}, s{sG}, {30*cfg.fstride}
s_add_u32 s{sT1}, s{sT1}, {FLAGBASE + 28*cfg.fstride}
v_mov_b32 v4, 0
v_mov_b32 v84, 1
s_mov_b64 exec, 1
buffer_atomic_add v84, v4, {sr(sWS)}, s{sT1} offen sc0 sc1
s_mov_b64 exec, -1
s_waitcnt vmcnt(0)
v_readfirstlane_b32 s{sJ}, v84
s_nop 3
s_cmp_ge_u32 s{sJ}, {cfg.nh if cfg.cjoin else cfg.nper}
s_cbranch_scc1 LA_end""")
    else:
        assert cfg.nper == 56 and cfg.nh == 56
        e(f"s_cmp_ge_u32 s{sH}, 14\ns_cbranch_scc1 LA_end\ns_mul_i32 s{sJ}, s{sWAVE}, 14\ns_add_u32 s{sJ}, s{sJ}, s{sH}")
    if cfg.stamps: e(f"s_add_u32 s{sWAVE}, s{sWAVE}, 4")
    e("LA_rsetup:")
    e(f"""s_mul_i32 s{sGF}, s{sG}, {30*cfg.fstride}
s_add_u32 s{sGF}, s{sGF}, {FLAGBASE}
v_mov_b32 v4, 0
v_lshrrev_b32 v8, 3, v0
v_and_b32 v9, 7, v0
v_lshlrev_b32 v2, 8, v8
v_lshl_add_u32 v2, v9, 4, v2
v_mul_u32_u24 v3, 896, v9
v_lshrrev_b32 v10, 5, v0
v_lshl_add_u32 v3, v10, 6, v3
v_and_b32 v8, 3, v8
v_lshl_add_u32 v3, v8, 3, v3""")
    e("LA_rnext:")
    if cfg.rev: e(f"s_sub_u32 s{sT0}, {97 + cfg.nh}, s{sJ}\ns_cmp_ge_u32 s{sJ}, {cfg.nh}\ns_cselect_b32 s{sJ}, s{sT0}, s{sJ}")
    e("LA_rloop:")
    e(f"""s_mul_i32 s{sCH}, s{sJ}, 4682
s_lshr_b32 s{sCH}, s{sCH}, 16
s_mul_i32 s{sT0}, s{sCH}, 14
s_sub_u32 s{sOC}, s{sJ}, s{sT0}
s_add_u32 s{sCH}, s{sROTO}, s{sCH}
s_sub_u32 s{sT0}, s{sCH}, 7
s_cmp_ge_u32 s{sCH}, 7
s_cselect_b32 s{sCH}, s{sT0}, s{sCH}
s_lshr_b32 s{sT2}, s{sOC}, 2
s_lshl_b32 s{sT1}, s{sCH}, 2
s_add_u32 s{sT1}, s{sT1}, s{sT2}
s_mul_i32 s{sT1}, s{sT1}, {cfg.fstride}
s_add_u32 s{sT1}, s{sT1}, s{sGF}
s_lshl_b32 s{sPB}, s{sG}, 6
s_add_u32 s{sPB}, s{sPB}, s{sT2}
s_mul_i32 s{sPB}, s{sPB}, {28*1024}
s_bfe_u32 s{sT0}, s{sOC}, 0x10001
s_lshl_b32 s{sT0}, s{sT0}, 11
s_add_u32 s{sPB}, s{sPB}, s{sT0}
s_and_b32 s{sT0}, s{sOC}, 1
s_lshl_b32 s{sT0}, s{sT0}, 7
s_add_u32 s{sPB}, s{sPB}, s{sT0}
s_mul_i32 s{sOB}, s{sG}, 112
s_lshl_b32 s{sT0}, s{sOC}, 3
s_add_u32 s{sOB}, s{sOB}, s{sT0}
s_mul_i32 s{sOB}, s{sOB}, 896
s_mov_b32 s{sTO}, 30000
s_lshl_b32 s{sT0}, s{sCH}, 12
s_add_u32 s{sPB}, s{sT0}, s{sPB}
s_mov_b32 s{sD2}, 0x04040404""")
    if cfg.stamps: e("s_memrealtime s[76:77]")
    sPEND, sNEW = sD2, sSTB
    e("LA_poll:")
    e(f"""s_mov_b64 exec, 1
v_mov_b32 v84, 0
s_sub_u32 s{sTO}, s{sTO}, 1
buffer_atomic_add v84, v4, {sr(sWS)}, s{sT1} offen sc0 sc1
s_mov_b64 exec, -1
s_waitcnt vmcnt(0)
v_readfirstlane_b32 s{sNEW}, v84
s_cmp_eq_u32 s{sTO}, 0
s_cselect_b32 s{sNEW}, -1, s{sNEW}
s_and_b32 s{sNEW}, s{sNEW}, s{sPEND}
s_cbranch_scc1 LA_go
s_sleep {cfg.sleep}
s_branch LA_poll""")
    e("LA_go:")
    if cfg.stamps: e("s_memrealtime s[78:79]")
    for q in range(4):
        e(f"s_bitcmp1_b32 s{sNEW}, {8*q+2}\ns_cbranch_scc0 LA_l{q}")
        for h in range(4*q, 4*q+4):
            e(f"s_add_u32 s{sT0}, s{sPB}, {h*4*28*1024}\nbuffer_load_dwordx4 {vr(16+4*h,4)}, v2, {sr(sWS)}, s{sT0} offen {cfg.ld_flags}")
        e(f"LA_l{q}:")
    e("s_waitcnt vmcnt(0)")
    if cfg.cjoin and cfg.cont:
        e(f"""s_cmp_lg_u32 s{sNEW}, s{sPEND}
s_cbranch_scc1 LA_nt
s_add_u32 s{sT0}, s{sGF}, {29*cfg.fstride}
v_mov_b32 v85, 1
s_mov_b64 exec, 1
buffer_atomic_add v85, v4, {sr(sWS)}, s{sT0} offen sc0 sc1
s_mov_b64 exec, -1""")
        e("LA_nt:")
    for q in range(4):
        e(f"s_bitcmp1_b32 s{sNEW}, {8*q+2}\ns_cbranch_scc0 LA_a{q}")
        A_ = 96 + 8*q
        for h in range(4*q, 4*q+4):
            for k in range(4):
                r = 16 + 4*h + k
                if h % 4 == 0: e(f"v_lshlrev_b32 v{A_+2*k}, 16, v{r}\nv_and_b32 v{A_+1+2*k}, 0xffff0000, v{r}")
                else: e(f"v_lshlrev_b32 v{86+2*(k&1)}, 16, v{r}\nv_and_b32 v{87+2*(k&1)}, 0xffff0000, v{r}\nv_pk_add_f32 {vr(A_+2*k,2)}, {vr(A_+2*k,2)}, {vr(86+2*(k&1),2)}")
        e(f"LA_a{q}:")
    e(f"s_andn2_b32 s{sPEND}, s{sPEND}, s{sNEW}\ns_cbranch_scc1 LA_poll")
    for k in range(4): e(f"v_pk_add_f32 {vr(8+2*k,2)}, {vr(96+2*k,2)}, {vr(104+2*k,2)}")
    for k in range(4): e(f"v_pk_add_f32 {vr(112+2*k,2)}, {vr(112+2*k,2)}, {vr(120+2*k,2)}")
    for k in range(4): e(f"v_pk_add_f32 {vr(8+2*k,2)}, {vr(8+2*k,2)}, {vr(112+2*k,2)}")
    if cfg.stamps: e("s_memrealtime s[80:81]")
    for k in range(4): e(f"v_cvt_pk_bf16_f32 v{80+k}, v{8+2*k}, v{9+2*k}")
    e(f"s_lshl_b32 s{sT0}, s{sCH}, 7\ns_add_u32 s{sT0}, s{sT0}, s{sOB}")
    e(f"buffer_store_dwordx2 v[80:81], v3, {sr(sOUT)}, s{sT0} offen {cfg.out_flags}")
    e(f"buffer_store_dwordx2 v[82:83], v3, {sr(sOUT)}, s{sT0} offen offset:32 {cfg.out_flags}")
    if cfg.cjoin and cfg.cont:
        e(f"s_waitcnt vmcnt(2)\nv_readfirstlane_b32 s{sJ}, v85\ns_nop 3\ns_add_u32 s{sJ}, s{sJ}, {cfg.nh}\ns_cmp_lt_u32 s{sJ}, 98\ns_cbranch_scc1 LA_rnext")
    if not cfg.cjoin: e(f"s_add_u32 s{sJ}, s{sJ}, {cfg.nper}\ns_cmp_lt_u32 s{sJ}, 98\ns_cbranch_scc1 LA_rloop")
    if cfg.stamps:
        e(f"s_waitcnt vmcnt(0) lgkmcnt(0)")
        e(f"v_mov_b32 v0, s76\nv_mov_b32 v1, s78\nv_mov_b32 v2, s{sTO}\nv_mov_b32 v3, s80\nv_mov_b32 v8, 0")
        if cfg.hst: e("v_mov_b32 v0, s82\nv_mov_b32 v1, s84\nv_mov_b32 v2, s86\nv_mov_b32 v3, s88")
        e(f"s_lshl_b32 s{sT0}, s2, 3\ns_add_u32 s{sT0}, s{sT0}, s{sWAVE}\ns_lshl_b32 s{sT0}, s{sT0}, 4\ns_add_u32 s{sT0}, s{sT0}, 0x8100000\ns_mov_b64 exec, 1")
        e(f"buffer_store_dwordx4 v[0:3], v8, {sr(sWS)}, s{sT0} offen")
    e("LA_end:\ns_endpgm")
    e("LA_hredo:\ns_waitcnt vmcnt(0)\ns_barrier\ns_branch LA_hrestart")
    e("LA_hn:")
    e(f"s_lshl_b32 s{sT0}, s{sG}, 2\nv_mov_b32 v12, s{sT0}\ns_mov_b32 s{sT1}, 30000")
    e("LA_hn1:")
    e(f"""global_load_dword v13, v12, s[16:17] sc0 sc1
s_sub_u32 s{sT1}, s{sT1}, 1
s_waitcnt vmcnt(0)
v_cmp_eq_u32 vcc, 0, v13
s_cbranch_vccz LA_hnret
s_cmp_lg_u32 s{sT1}, 0
s_cbranch_scc1 LA_hn1
s_branch LA_hnret""")

    e(".p2align 6\nLA_compute:")
    if cfg.prio_c: e(f"s_setprio {cfg.prio_c}")
    stamp()
    e("LA_crestart:")
    t = SA
    ln = vT3
    e(f"v_mbcnt_lo_u32_b32 v{ln}, -1, 0\nv_mbcnt_hi_u32_b32 v{ln}, -1, v{ln}\ns_mov_b32 s{sC}, {hex(f2u(C_SCALE))}")
    e(f"""v_lshrrev_b32 v{t}, 4, v{ln}
v_and_b32 v{t+1}, 15, v{ln}
v_lshrrev_b32 v{t+2}, 2, v{ln}
v_and_b32 v{t+3}, 3, v{ln}
v_mul_u32_u24 v{vT0}, {ST}, v{t+2}
v_lshl_add_u32 v{vT0}, v{t+3}, 3, v{vT0}
v_add_u32 v{vAV}, {2*PAIR}, v{vT0}
v_mul_u32_u24 v{vAK}, {ST}, v{t+1}
v_lshl_add_u32 v{vAK}, v{t}, 4, v{vAK}
s_lshl_b32 s{sT0}, s{sWAVE}, 8
s_add_u32 s{sT0}, s{sT0}, {XBASE + 2*XT}
v_add_u32 v{vAK}, s{sT0}, v{vAK}
v_lshrrev_b32 v{t+4}, 1, v{t+1}
v_and_b32 v{t+5}, 1, v{ln}
v_lshl_add_u32 v{t+4}, v{t+4}, 2, v{t+5}
v_bfe_u32 v{t+5}, v{ln}, 4, 1
v_lshl_add_u32 v{t+4}, v{t+5}, 1, v{t+4}
v_lshrrev_b32 v{t+5}, 5, v{ln}
v_add_u32 v{t+4}, v{t+4}, v{t+5}
v_lshlrev_b32 v{vT1}, 10, v{t+1}
v_lshl_add_u32 v{vT1}, v{t+4}, 4, v{vT1}""")
    e("s_waitcnt lgkmcnt(0)")
    srds([sWS, sOUT])
    e(f"s_or_b32 s{sT0}, s{sWAVE}, s{sH}\ns_or_b32 s{sT0}, s{sT0}, s{sMODE}\ns_cmp_lg_u32 s{sT0}, 0\ns_cbranch_scc1 LA_noinit")
    e(f"s_mul_i32 s{sT0}, s{sG}, {30*cfg.fstride}\ns_add_u32 s{sT0}, s{sT0}, {FLAGBASE}")
    e(f"v_mul_u32_u24 v{Q0}, {cfg.fstride}, v{ln}\nv_mov_b32 v{Q0+1}, 0\ns_mov_b64 exec, 0x3fffffff")
    e(f"buffer_store_dword v{Q0+1}, v{Q0}, {sr(sWS)}, s{sT0} offen sc0 sc1\ns_mov_b64 exec, -1")
    e("LA_noinit:")
    for i in range(0, 128, 2): e(f"v_mov_b64 {vr(i,2)}, 0")
    e(f"v_mov_b64 {vr(vL,2)}, 0")
    e(f"s_mov_b32 s{sCNT}, 6\ns_mov_b32 s{sIDX}, 2")
    if cfg.w3: e(f"s_cmp_eq_u32 s{sWAVE}, 3\ns_cbranch_scc1 LA_c1")
    nst0 = nst[0]

    def compute(nq):
        global vAO
        sfx = str(nq)
        nst[0] = nst0
        e.q = []
        P32 = Plan(32, 6, FB6); P16 = Plan(16, 6, FB6)
        PQ = Plan(32, 8, FB6 + [SA, SA+4])
        PO = Plan(32, 8, FB6 + [72, 76])
        if cfg.half0: e(f"s_branch LA_b0{sfx}\nLA_hb{sfx}:\ns_barrier\ns_branch LA_nh{sfx}\nLA_b0{sfx}:")
        e("s_barrier")
        stamp()
        qp = u_qp(nq)
        def xload(i): return (f"ds_read_b128 {vr(SB+4*i,4)}, v{vAK} offset:{(i & 1)*128 + (i >> 1)*64}", f"x{i}")
        x0 = [xload(i) for i in range(nq)]; x1 = [xload(2+i) for i in range(nq)]
        for it in x0: e.ds(*it)
        for mm in range(PQ.pre):
            for ld in qp[mm].loads: e.ds(ld(PQ.reg(mm)), ("qp", mm))
        e.wait({("qp", 0)})
        ent = list(e.q)
        e(f".p2align 3\nLA_qp{sfx}:")
        scal = [20, f"s_add_u32 s{sIDX}, s{sIDX}, 1", f"s_cmp_eq_u32 s{sIDX}, 3", f"s_cselect_b32 s{sIDX}, 0, s{sIDX}", f"s_cselect_b32 s{sDELTA}, -2, 1",
                f"s_mul_i32 s{sD2}, s{sDELTA}, {XT}", f"s_mul_i32 s{sDELTA}, s{sDELTA}, {PAIR}", f"s_sub_u32 s{sCNT}, s{sCNT}, 1", f"s_cmp_lg_u32 s{sCNT}, 0"]
        fx = {6: [x1[0]], 49: [f"v_add_u32 v{vAV}, s{sDELTA}, v{vAV}", f"v_add_u32 v{vAK}, s{sD2}, v{vAK}"]}
        if nq == 2: fx[10] = [x1[1]]
        if cfg.half0:
            fx[16] = [f"s_cmp_eq_u32 s{sCNT}, 6"]
            fx[18] = [f"s_cbranch_scc1 LA_hb{sfx}", f"LA_nh{sfx}:"]
        sv = list(e.L)
        _, bar = emit_block(e, cfg, "qp", qp, PQ, qp, PQ, "qpn", fixed=fx, post=x0, scal=scal)
        assert bar == 51, bar
        rename(e, "qpn", "qp"); steady = list(e.q)
        assert steady == ent[len(ent)-len(steady):] , (steady, ent)
        e.L, e.q = sv, list(ent)
        emit_block(e, cfg, "qp", qp, PQ, qp, PQ, "qpn", fixed=fx, post=x0, scal=scal)
        rename(e, "qpn", "qp"); assert e.q == steady
        e(f"s_cbranch_scc1 LA_qp{sfx}")
        allu = {(a, dt): qp[a*16+dt] for a in range(2) for dt in range(16)}
        order = [(0, dt) for dt in range(6)]
        for dt in range(16):
            order.append((1, dt))
            if dt + 6 < 16: order.append((0, dt+6))
        ql = [allu[k] for k in order]
        fin = {dt: order.index((1, dt)) for dt in range(16)}
        def qconv(ks, pk=False):
            ops = []
            for qt in range(nq):
                b = oreg(qt, 2*ks); q = qreg(qt, ks)
                if pk: ops += [f"v_pk_mul_f32 {vr(b+k,2)}, {vr(b+k,2)}, {sr(sC,2)} op_sel_hi:[1,0]" for k in range(0, 8, 2)]
                else: ops += [f"v_mul_f32 v{b+k}, s{sC}, v{b+k}" for k in range(8)]
                ops += [f"v_cvt_pk_bf16_f32 v{q+k}, v{b+2*k}, v{b+2*k+1}" for k in range(4)]
            return ops
        def qswap(ks):
            return [f"v_permlane16_swap_b32 v{qreg(qt,ks)+k}, v{qreg(qt,ks)+k+2}" for qt in range(nq) for k in range(2)]
        dly = 6 if nq == 2 else 10
        NA = cfg.convA if nq == 2 else 4
        NC = cfg.convC if nq == 2 else 3
        st = []
        for ks in range(NA):
            st += [(op, 2*fin[2*ks+1] + dly) for op in qconv(ks)]
            if ks: st += [(op, 0) for op in qswap(ks-1)]
        fx = {2: [x1[0]], 49: [f"v_mov_b32 v{vAK}, v{vT1}", f"v_mov_b32 v{vAV}, v{vT0}"]}
        if nq == 2: fx[4] = [x1[1]]
        qk0 = u_qk(SA + 0, 0, nq, ksmajor=True)
        lo, _ = emit_block(e, cfg, "qp", ql, PQ, qk0, P16, "qk0", fixed=fx, streams=[st])
        if cfg.stamps: stamp()
        if nq == 2:
            e(f"s_or_b32 s{sT0}, s{sWAVE}, s{sH}\ns_cmp_lg_u32 s{sT0}, 0\ns_cbranch_scc1 LA_noinit2")
            e(f"s_lshl_b32 s{sT0}, s{sG}, 2\nv_mov_b32 v{vT2}, s{sT0}\nv_mov_b32 v{vT3}, 1\ns_mov_b64 exec, 1\ns_waitcnt vmcnt(0)")
            e(f"global_store_dword v{vT2}, v{vT3}, s[16:17] sc0 sc1\ns_mov_b64 exec, -1")
            e("LA_noinit2:")
        for op, _ in lo[0]: e(op)
        if nq == 1: e("s_nop 3")
        for ks in range(NA, 8):
            ops = qconv(ks, pk=True)
            if ks >= 8 - NC: ops = [o for o in ops if "pk_mul" in o]
            for op in ops: e(op)
            if ks < 8 - NC or ks == 8 - NC:
                for op in qswap(ks-1): e(op)
        st = []
        for ks in range(8 - NC, 8):
            st += [(o, 0) for o in qconv(ks) if "cvt" in o]
            st += [("s_nop 0", 0)] * (1 if nq == 2 else 2) + [(o, 0) for o in qswap(ks)]
        e("s_nop 1")
        st8 = u_qk(SB, PAIR, nq) + u_pv(SA, PAIR, nq, first=True)
        lo, _ = emit_block(e, cfg, "qk0", qk0, P16, st8, P32, "m", streams=[st])
        assert not lo[0]
        pvl = u_pv(SB, 0, nq)
        t = SA
        q_att = list(e.q)
        def attention(tag):
            el = elems(nq)
            st = []
            for k in range(17):
                if k < 16: st += [(o, 4 if nq == 2 else 8) for o in sm_exp(SA, el[k])]
                if k: st += [(o, 0) for o in sm_post(SA, el[k-1])]
            pre = st[:0]
            fx = {}; sm_tail(fx, SB, nq)
            g = 4 if nq == 2 else 8
            per = (len(st) + (29 - g)) // (30 - g)
            for k in range(0, len(st), per):
                fx[g] = [o for o, _ in st[k:k+per]] + fx.get(g, []); g += 1
            assert g <= 30
            fx.setdefault(53, []).extend([f"v_add_u32 v{vAK}, {2*PAIR}, v{vAK}", f"v_add_u32 v{vAV}, {2*PAIR}, v{vAV}"])
            lA = u_qk(SA, 0, nq) + u_pv(SB, 0, nq)
            lB = u_qk(SB, PAIR, nq) + u_pv(SA, PAIR, nq)
            emit_block(e, cfg, "m", st8, P32, lA, P32, "mA", fixed=fx, scal=[40, f"s_mov_b32 s{sCNT}, 15", f"s_mov_b32 s{sDELTA}, {(-2*PAIR) & 0xffffffff}"])
            q_entry = list(e.q)
            e(f".p2align 3\nLA_main{sfx}{tag}:")
            fx = {}; sm_head(fx, SB, nq); sm_tail(fx, SA, nq)
            emit_block(e, cfg, "mA", lA, P32, lB, P32, "mB", fixed=fx)
            fx = {}; sm_head(fx, SA, nq); sm_tail(fx, SB, nq)
            fx.setdefault(53, []).extend([f"v_add_u32 v{vAK}, s{sDELTA}, v{vAK}", f"v_add_u32 v{vAV}, s{sDELTA}, v{vAV}"])
            emit_block(e, cfg, "mB", lB, P32, lA, P32, "mA", fixed=fx,
                       scal=[56, f"s_sub_u32 s{sDELTA}, 0, s{sDELTA}", f"s_sub_u32 s{sCNT}, s{sCNT}, 1", f"s_cmp_lg_u32 s{sCNT}, 0"])
            assert e.q == q_entry, (e.q, q_entry)
            e(f"s_cbranch_scc1 LA_main{sfx}{tag}")
            if not tag: stamp()
            else: e.q = [] if cfg.stamps else e.q
            if tag and cfg.stamps: e('s_waitcnt lgkmcnt(0)')
            rename(e, "mA", "junk")
            pvl = u_pv(SB, 0, nq)
            for mm in range(5):
                for ld in pvl[mm].loads: e.ds(ld(P16.reg(mm)), ("pvl", mm))
            hl = sm_head_list(SB, nq)
            ex = [o for k_, ops in enumerate(hl) for o in ops if k_ % 2 == 0]; ot = [o for k_, ops in enumerate(hl) for o in ops if k_ % 2 == 1]
            for o in ex: e(o)
            t = SA
            e(f"v_mbcnt_lo_u32_b32 v{t+2}, -1, 0")
            for o in ot: e(o)
        e(f"s_cmp_lg_u32 s{sMODE}, 0\ns_cbranch_scc1 LA_gen{sfx}")
        attention("")
        q_join = list(e.q)
        e(f"LA_join{sfx}:")
        e(f"v_mbcnt_hi_u32_b32 v{t+2}, -1, v{t+2}\nv_lshrrev_b32 v{t+3}, 2, v{t+2}")
        misc = f"""v_lshlrev_b32 v{t+3}, 7, v{t+3}
v_bfe_u32 v{t+4}, v{t+2}, 3, 2
v_lshl_add_u32 v{t+3}, v{t+4}, 5, v{t+3}
v_and_b32 v{t+4}, 3, v{t+2}
v_lshl_add_u32 v{t+3}, v{t+4}, 3, v{t+3}
v_add_u32 v{vT0}, {OBIAS}, v{t+3}
v_xor_b32 v{vT1}, 32, v{vT0}
v_xor_b32 v{vT2}, 64, v{vT0}
v_xor_b32 v{vT3}, 0x60, v{vT0}""".split("\n")
        def ocvt(ks): return [f"v_cvt_pk_bf16_f32 v{qreg(qt,ks)+k}, v{oreg(qt,2*ks)+2*k}, v{oreg(qt,2*ks)+2*k+1}" for qt in range(nq) for k in range(4)]
        st = [(o, 0) for o in misc] + [(o, 2*(2*ks+1) + dly) for ks in range(8) for o in ocvt(ks)]
        vAO = vT0
        op0 = u_op(ACC0, 32768, nq)
        lo, _ = emit_block(e, cfg, "pvl", pvl, P16, op0, PO, "o0", streams=[st])
        stamp()
        sFL = sD2; sCHF = sIDX
        opA = u_op(ACC1, 0, nq); opB = u_op(ACC0, 32768, nq)
        sal = f"""s_lshl_b32 s{sT1}, s{sG}, 2
s_lshl_b32 s{sT0}, s{sG}, 4
s_add_u32 s{sT0}, s{sT0}, s{sH}
s_lshl_b32 s{sT0}, s{sT0}, 2
s_add_u32 s{sT0}, s{sT0}, s{sWAVE}
s_mul_i32 s{sSTB}, s{sT0}, {28*1024}
s_mov_b32 s{sCH}, s{sROTO}
s_mul_i32 s{sFL}, s{sG}, 30
s_add_u32 s{sFL}, s{sFL}, s{sWAVE}
s_mul_i32 s{sFL}, s{sFL}, {cfg.fstride}
s_add_u32 s{sFL}, s{sFL}, {FLAGBASE}
s_mov_b32 s{sCHF}, s{sROTO}
s_mov_b32 s{sCNT}, 3
s_lshl_b32 s{sLO}, s{sH}, 1
s_and_b32 s{sLO}, s{sLO}, 24
s_lshl_b32 s{sLO}, 1, s{sLO}
s_mov_b32 s{sDELTA}, {(-2*PAIR) & 0xffffffff}""".split("\n")
        a, b2 = 64, 65
        lo_t, hi_t = hex(f2u(2.0**-cfg.T)), hex(f2u(2.0**cfg.T))
        lred = f"""v_mov_b32 v{a}, v{vL}
v_mov_b32 v{b2}, v{vL+1}
v_mbcnt_lo_u32_b32 v{vSO}, -1, 0
v_mbcnt_hi_u32_b32 v{vSO}, -1, v{vSO}
v_permlane32_swap_b32 v{a}, v{vL}
v_permlane32_swap_b32 v{b2}, v{vL+1}
v_add_f32 v{vL}, v{vL}, v{a}
v_add_f32 v{vL+1}, v{vL+1}, v{b2}
v_mov_b32 v{a}, v{vL}
v_mov_b32 v{b2}, v{vL+1}
v_mov_b32 v{vONE}, {hi_t}
v_mov_b32 v{vRD}, s{sT1}
v_permlane16_swap_b32 v{a}, v{vL}
v_permlane16_swap_b32 v{b2}, v{vL+1}
v_add_f32 v{vL}, v{vL}, v{a}
v_add_f32 v{vL+1}, v{vL+1}, v{b2}""".split("\n")
        if nq == 1: lred = [o for o in lred if f"v{b2}" not in o.replace(f"v{b2}0", "")] ; lred.insert(3, "s_nop 0"); lred.insert(9, "s_nop 0")
        chk = [f"v_med3_f32 v{a}, v{vL}, s{sT2}, v{vONE}", f"v_cmp_neq_f32 vcc, v{a}, v{vL}"]
        if nq == 2: chk = [chk[0], f"v_med3_f32 v{b2}, v{vL+1}, s{sT2}, v{vONE}", chk[1], f"v_cmp_neq_f32 s[{sLK}:{sLK+1}], v{b2}, v{vL+1}"]
        late = f"""v_min_u32 v{vFOFF}, 1, v{vSO}
v_mul_u32_u24 v{vFOFF}, 0x700000, v{vFOFF}
v_lshlrev_b32 v{vFOFF}, 8, v{vFOFF}
v_lshlrev_b32 v{vSO}, 4, v{vSO}
v_mov_b32 v{vONE}, s{sLO}
v_rcp_f32 v{vL}, v{vL}
v_rcp_f32 v{vL+1}, v{vL+1}""".split("\n")
        adr = lambda d: [f"v_add_u32 v{vAO+i}, {d}, v{vAO+i}" for i in range(4)]
        rem = [(o, 3 if nq == 2 else 6) for o, _ in lo[0]]
        fx = {49: adr(2*PAIR)[:2], 50: adr(2*PAIR)[2:]}
        extra = lred + chk
        dec = ([f"s_or_b64 vcc, vcc, s[{sLK}:{sLK+1}]"] if nq == 2 else []) + [f"s_cmp_lg_u64 vcc, 0", f"s_cselect_b32 s{sT3}, 1, {1 if cfg.force else 0}",
               f"s_cmp_eq_u32 s{sMODE}, 0", f"s_cselect_b32 s{sT3}, s{sT3}, s{sMODE}", f"s_and_b32 s{sT3}, s{sT3}, 1"]
        sal2 = [f"s_lshl_b32 s{sT1}, s{sWAVE}, 2", f"s_add_u32 s{sT1}, s{sT1}, {LDS_FLAG}", f"s_mov_b32 s{sT2}, {lo_t}"] + sal[1:]
        for k_, o in enumerate(dec): fx[34 + 2*k_] = [o]
        fx[46] = fx.get(46, []) + [f"v_mov_b32 v{a}, s{sT3}"]
        fx[48] = [(f"ds_write_b32 v{vRD}, v{a}", "fw"), f"v_mov_b32 v{b2}, {LDS_FLAG}"]
        lo, bar = emit_block(e, cfg, "o0", op0, PO, opA, PO, "oA", fixed=fx, streams=[rem + [(o, 52) for o in late]], scal=[0] + sal2,
                             force={8 + k_: [o] for k_, o in enumerate(extra)}, post=[(f"ds_read_b128 v[80:83], v{b2}", "fr")])
        assert bar == 51 and cfg.formal
        for o, _ in lo[0]:
            assert "cvt" not in o
            e(o)
        assert "fr" not in e.q
        e(f"v_or3_b32 v80, v80, v81, v82\nv_or_b32 v80, v80, v83\nv_cmp_ne_u32 vcc, 0, v80\ns_cbranch_vccnz LA_redo{sfx}")
        q_entry = list(e.q)
        nstore = 2*nq
        lid = [0]; alt = []
        if cfg.dloc == 1: e(f"s_lshr_b32 s{sT0}, s{sH}, 2\ns_cmp_eq_u32 s{sT0}, s{sWAVE}\ns_cselect_b64 vcc, -1, 0")
        if cfg.dloc == 2: e(f"s_mov_b64 vcc, -1")
        def flag_sal(first=False):
            if first:
                return [f"s_mul_i32 s{sT1}, s{sCHF}, {4*cfg.fstride}", f"s_add_u32 s{sT1}, s{sT1}, s{sFL}", f"s_add_u32 s{sT2}, s{sCHF}, 1",
                        f"s_cmp_eq_u32 s{sT2}, 7", f"s_cselect_b32 s{sT2}, 0, s{sT2}", f"s_cmp_eq_u32 s{sCNT}, 3",
                        f"s_cselect_b32 s{sT1}, 0x7ff00000, s{sT1}", f"s_cselect_b32 s{sCHF}, s{sCHF}, s{sT2}"]
            return [f"s_mul_i32 s{sT1}, s{sCHF}, {4*cfg.fstride}", f"s_add_u32 s{sT1}, s{sT1}, s{sFL}", f"s_add_u32 s{sCHF}, s{sCHF}, 1",
                    f"s_cmp_eq_u32 s{sCHF}, 7", f"s_cselect_b32 s{sCHF}, 0, s{sCHF}"]
        def flag_op(cnt): return [f"s_waitcnt vmcnt({20 if cfg.nowait else cnt})", f"buffer_atomic_add v{vONE}, v{vFOFF}, {sr(sWS)}, s{sT1} offen sc1"]
        def store_sal():
            return [f"s_lshl_b32 s{sT0}, s{sCH}, 12", f"s_add_u32 s{sT0}, s{sT0}, s{sSTB}", f"s_add_u32 s{sCH}, s{sCH}, 1",
                    f"s_cmp_eq_u32 s{sCH}, 7", f"s_cselect_b32 s{sCH}, 0, s{sCH}"]
        def store_ops(acc, S, pk=False):
            ops = []
            for p in range(nstore):
                b = acc + 8*p
                if pk: ops += [f"v_pk_mul_f32 {vr(b+k,2)}, {vr(b+k,2)}, {vr(vL,2)} op_sel:[0,{p//2}] op_sel_hi:[1,{p//2}]" for k in range(0, 8, 2)]
                else: ops += [f"v_mul_f32 v{b+k}, v{vL+p//2}, v{b+k}" for k in range(8)]
                ops += [f"v_cvt_pk_bf16_f32 v{S+4*p+k}, v{b+2*k}, v{b+2*k+1}" for k in range(4)]
                base = f"buffer_store_dwordx4 {vr(S+4*p,4)}, v{vSO}, {sr(sWS)}, s{sT0} offen offset:{p*1024} "
                if cfg.dloc:
                    lid[0] += 1; L_ = f"LA_st{sfx}_{lid[0]}"
                    ops += [f"s_cbranch_vccnz {L_}a\n{base}{cfg.st_flags}\n{L_}b:"]
                    alt.append(f"{L_}a:\n{base}{cfg.loc_flags}\ns_branch {L_}b")
                elif not cfg.nostore: ops += [base + cfg.st_flags]
            return ops
        e(f".p2align 3\nLA_op{sfx}:")
        g0 = 0 if nq == 2 else 2
        lo, _ = emit_block(e, cfg, "oA", opA, PO, opB, PO, "oB", fixed={62: flag_op(nstore+1)}, streams=[[(o, g0) for o in store_ops(ACC0, STG0)]],
                   scal=[0] + store_sal() + flag_sal(True), barrier=(f"s_cmp_lt_u32 s{sCNT}, {2 if cfg.lastbar < 46 else 1}", f"LA_nb1{sfx}"))
        assert not lo[0]
        fx = {49: adr(f"s{sDELTA}")[:2], 50: adr(f"s{sDELTA}")[2:], 62: flag_op(nstore+1),
              54: [f"s_sub_u32 s{sDELTA}, 0, s{sDELTA}"], 56: [f"s_sub_u32 s{sCNT}, s{sCNT}, 1"], 58: [f"s_cmp_lg_u32 s{sCNT}, 0"]}
        lo, _ = emit_block(e, cfg, "oB", opB, PO, opA, PO, "oA", fixed=fx, streams=[[(o, g0) for o in store_ops(ACC1, STG1)]],
                   scal=[0] + store_sal() + flag_sal(), barrier=(f"s_cmp_lt_u32 s{sCNT}, {3 if cfg.lastbar < 45 else 2}", f"LA_nb2{sfx}"))
        assert not lo[0]
        assert e.q == q_entry
        e(f"s_cbranch_scc1 LA_op{sfx}")
        tk = []
        if cfg.cjoin:
            tk = [f"s_mul_i32 s{sT2}, s{sG}, {30*cfg.fstride}", f"s_add_u32 s{sT2}, s{sT2}, {FLAGBASE + 29*cfg.fstride}", "v_mov_b32 v84, 1",
                  f"buffer_atomic_add v84, v{vFOFF}, {sr(sWS)}, s{sT2} offen sc0 sc1"]
        for o in tk + store_sal() + store_ops(ACC0, STG0, pk=True) + flag_sal() + flag_op(nstore+1) + flag_sal() + flag_op(1): e(o)
        if cfg.cjoin and not cfg.stamps: e(f"s_waitcnt vmcnt(0) lgkmcnt(0)")
        if cfg.wb: e(f"s_cbranch_vccz LA_nwb{sfx}\nbuffer_wbl2 sc1\nLA_nwb{sfx}:")
        if cfg.stamps:
            stamp()
            e("s_waitcnt vmcnt(0)")
            stamp()
            n = nst[0]
            for i in range(16): e(f"v_mov_b32 v{i}, s{72+i}" if (i % 8) < n else f"v_mov_b32 v{i}, 0")
            e("v_mov_b32 v7, s98\ns_getreg_b32 s98, hwreg(HW_REG_XCC_ID)\nv_mov_b32 v15, s98")
            e(f"s_lshl_b32 s{sT0}, s2, 3\ns_add_u32 s{sT0}, s{sT0}, s{sWAVE}\ns_lshl_b32 s{sT0}, s{sT0}, 6\ns_add_u32 s{sT0}, s{sT0}, 0x8000000")
            e(f"v_mov_b32 v16, 0\ns_mov_b64 exec, 1")
            for i in range(4): e(f"buffer_store_dwordx4 v[{4*i}:{4*i+3}], v16, {sr(sWS)}, s{sT0} offen offset:{16*i}")
        if cfg.cjoin and not cfg.noreduce:
            e(f"v_readfirstlane_b32 s{sCNT}, v84\ns_mov_b64 exec, -1\nv_mbcnt_lo_u32_b32 v0, -1, 0\nv_mbcnt_hi_u32_b32 v0, -1, v0\ns_add_u32 s{sCNT}, s{sCNT}, {cfg.nh}\ns_cmp_lt_u32 s{sCNT}, 98\ns_cbranch_scc1 LA_rsetup")
        e("s_endpgm")
        for a_ in alt: e(a_)
        cold.append((nq, attention, q_att, q_join))
    cold = []
    compute(2)
    if cfg.w3:
        e(".p2align 6\nLA_c1:")
        compute(1)
    e("LA_endoftext:")
    for nq, attention, q_att, q_join in cold:
        sfx = str(nq)
        e(f"LA_redo{sfx}:\ns_waitcnt lgkmcnt(0)\ns_barrier\ns_add_u32 s{sMODE}, s{sMODE}, 1\ns_branch LA_crestart")
        e(f"LA_gen{sfx}:")
        e(f"""v_mbcnt_lo_u32_b32 v{vMX}, -1, 0
v_mbcnt_hi_u32_b32 v{vMX}, -1, v{vMX}
s_lshl_b32 s{sT0}, s{sWAVE}, 9
s_add_u32 s{sT0}, s{sT0}, {LDS_NEG}
v_lshl_add_u32 v{vMX}, v{vMX}, 3, s{sT0}
ds_read_b64 {vr(vNEG,2)}, v{vMX}
s_waitcnt lgkmcnt(0)
v_mov_b32 v{vMX}, 0xff800000
v_mov_b32 v{vMX+1}, 0xff800000
s_cmp_eq_u32 s{sMODE}, 2
s_cbranch_scc1 LA_gen2{sfx}
v_mov_b64 {vr(vNEG,2)}, 0""")
        e(f"LA_gen2{sfx}:")
        e.q = list(q_att)
        GEN[0] = True
        attention("g")
        GEN[0] = False
        assert e.q == q_join
        t = SA + 8
        e(f"""v_mov_b32 v{t}, v{vMX}
v_mov_b32 v{t+1}, v{vMX+1}
s_nop 1
v_permlane32_swap_b32 v{t}, v{vMX}
v_permlane32_swap_b32 v{t+1}, v{vMX+1}
v_max_f32 v{vMX}, v{vMX}, v{t}
v_max_f32 v{vMX+1}, v{vMX+1}, v{t+1}
v_mov_b32 v{t}, v{vMX}
v_mov_b32 v{t+1}, v{vMX+1}
s_nop 1
v_permlane16_swap_b32 v{t}, v{vMX}
v_permlane16_swap_b32 v{t+1}, v{vMX+1}
v_max_f32 v{vMX}, v{vMX}, v{t}
v_max_f32 v{vMX+1}, v{vMX+1}, v{t+1}
v_sub_f32 v{vMX}, 0, v{vMX}
v_sub_f32 v{vMX+1}, 0, v{vMX+1}
v_mbcnt_hi_u32_b32 v{t}, -1, v{SA+2}
s_lshl_b32 s{sT0}, s{sWAVE}, 9
s_add_u32 s{sT0}, s{sT0}, {LDS_NEG}
v_lshl_add_u32 v{t}, v{t}, 3, s{sT0}
ds_write_b64 v{t}, {vr(vMX,2)}
s_waitcnt lgkmcnt(0)
s_branch LA_join{sfx}""")
    kd = f""".amdhsa_kernel {KA}
  .amdhsa_next_free_vgpr 256
  .amdhsa_next_free_sgpr 100
  .amdhsa_accum_offset 256
  .amdhsa_group_segment_fixed_size 0
  .amdhsa_kernarg_size 64
  .amdhsa_user_sgpr_count 2
  .amdhsa_user_sgpr_kernarg_segment_ptr 1
  .amdhsa_system_sgpr_workgroup_id_x 1
.end_amdhsa_kernel
"""
    return hdr + "\n" + "\n".join(e.L) + '\n.section .rodata,"a"\n.p2align 6\n' + kd

if __name__ == "__main__":
    cfg = Cfg()
    for a in sys.argv[2:]:
        k, v = a.split("=")
        cur = getattr(cfg, k)
        setattr(cfg, k, type(cur)(eval(v)) if not isinstance(cur, str) else v.replace("+", " "))
    open(sys.argv[1], "w").write(gen(cfg))
```
